```python
import torch

def _softmax(x, axis=-1):
    return torch.softmax(x, dim=axis)
def _gelu(x):
    return torch.nn.functional.gelu(x, approximate="tanh")
def _silu(x):
    return torch.nn.functional.silu(x)
def _sigmoid(x):
    return torch.sigmoid(x)
def _layernorm(x, axis=-1, eps=1e-5):
    m = x.mean(dim=axis, keepdim=True)
    v = x.var(dim=axis, keepdim=True, unbiased=False)
    return (x - m) / torch.sqrt(v + eps)
def _scatter_add(tgt, idx, src, axis=0):
    return tgt.clone().index_add_(axis, idx, src)
def _segment_sum(src, seg, n):
    out = torch.zeros((n,) + src.shape[1:], dtype=src.dtype)
    return out.index_add_(0, seg, src)
def _pad(x, pw):
    flat = tuple(v for pair in reversed(pw) for v in pair)
    return torch.nn.functional.pad(x, flat)

kernel_name = 'recurrent_scan__ssm_conv_s5__mixer_token_mlp__prompt'

def setup_inputs():

    _w = (lambda a: (lambda t: t.to(torch.bfloat16) if t.is_floating_point() else t)(torch.as_tensor(a)))
    def _A_setup():
        B, S, D = 1, 2048, 512
        P = D
        Lambda_re = -0.5 * (lambda _x: torch.exp(torch.as_tensor(_x)))((lambda *s: torch.randn(*s, dtype=torch.bfloat16) * 0.4)(P))
        Lambda_im = (lambda *s: torch.randn(*s, dtype=torch.bfloat16) * 0.4)(P) * 1.0
        B_re = (lambda *s: torch.randn(*s, dtype=torch.bfloat16) * 0.4)(P, D) * (D ** -0.5)
        B_im = (lambda *s: torch.randn(*s, dtype=torch.bfloat16) * 0.4)(P, D) * (D ** -0.5)
        C_re = (lambda *s: torch.randn(*s, dtype=torch.bfloat16) * 0.4)(D, P) * (P ** -0.5)
        C_im = (lambda *s: torch.randn(*s, dtype=torch.bfloat16) * 0.4)(D, P) * (P ** -0.5)
        log_dt = (lambda *s: torch.randn(*s, dtype=torch.bfloat16) * 0.4)(P) * 0.3 - 2.0
        Dskip = (lambda *s: torch.randn(*s, dtype=torch.bfloat16) * 0.2)(D)
        return {
            "x": _w((lambda *s: torch.randn(*s, dtype=torch.bfloat16) * 0.05)(B, S, D)),
            "Lambda_re": _w(Lambda_re),
            "Lambda_im": _w(Lambda_im),
            "B_re": _w(B_re),
            "B_im": _w(B_im),
            "C_re": _w(C_re),
            "C_im": _w(C_im),
            "log_dt": _w(log_dt),
            "Dskip": _w(Dskip),
        }
    _A_in = _A_setup()

    def _B_setup():
        B, S, D, F = 1, 2048, 512, 1792
        return {
            "x": _w((lambda *s: torch.randn(*s, dtype=torch.bfloat16) * 0.05)(B, S, D)),
            "w1": _w((lambda *s: torch.randn(*s, dtype=torch.bfloat16) * 0.4)(S, F) * (S ** -0.5)),
            "b1": _w((lambda *s: torch.randn(*s, dtype=torch.bfloat16) * 3.2)(F) * 0.02),
            "w2": _w((lambda *s: torch.randn(*s, dtype=torch.bfloat16) * 0.4)(F, S) * (F ** -0.5)),
            "b2": _w((lambda *s: torch.randn(*s, dtype=torch.bfloat16) * 0.8)(S) * 0.02),
        }
    _B_in = _B_setup()

    return {
        "A_x": _A_in["x"],
        "A_Lambda_re": _A_in["Lambda_re"],
        "A_Lambda_im": _A_in["Lambda_im"],
        "A_B_re": _A_in["B_re"],
        "A_B_im": _A_in["B_im"],
        "A_C_re": _A_in["C_re"],
        "A_C_im": _A_in["C_im"],
        "A_log_dt": _A_in["log_dt"],
        "A_Dskip": _A_in["Dskip"],
        "B_x": _B_in["x"],
        "B_w1": _B_in["w1"],
        "B_b1": _B_in["b1"],
        "B_w2": _B_in["w2"],
        "B_b2": _B_in["b2"],
    }

def reference(A_x, A_Lambda_re, A_Lambda_im, A_B_re, A_B_im, A_C_re, A_C_im, A_log_dt, A_Dskip, B_x, B_w1, B_b1, B_w2, B_b2):
    def _A_ref(x, Lambda_re, Lambda_im, B_re, B_im, C_re, C_im, log_dt, Dskip):
        Bsz, L, H = x.shape
        Lam = Lambda_re + 1j * Lambda_im
        Bmat = B_re + 1j * B_im
        Cmat = C_re + 1j * C_im
        dt = torch.exp(log_dt)
        Lam_bar = torch.exp(dt * Lam)
        B_bar = ((Lam_bar - 1.0) / Lam)[:, None] * Bmat
        Bu = torch.einsum("bld,pd->blp", x + 0j, B_bar)
        h = torch.zeros_like(Bu[:, 0, :])
        hs = []
        for t in range(L):
            h = Lam_bar[None, :] * h + Bu[:, t, :]
            hs.append(h)
        hseq = torch.stack(hs, 1)
        y = 2.0 * torch.einsum("blp,dp->bld", hseq, Cmat).real + x * Dskip[None, None, :]
        return y

    def _B_ref(x, w1, b1, w2, b2):
        B, S, D = x.shape
        h = _layernorm(x, axis=-1)
        u = torch.einsum("bsd,sf->bdf", h, w1) + b1
        u = _gelu(u)
        y = torch.einsum("bdf,fs->bds", u, w2) + b2
        return (lambda x, *d: x.permute(*d))(y, 0, 2, 1)

    x = A_x
    xn = _layernorm(x, axis=-1)
    s = _A_ref(xn, A_Lambda_re, A_Lambda_im, A_B_re, A_B_im, A_C_re, A_C_im, A_log_dt, A_Dskip)
    g = _silu(_B_ref(xn, B_w1, B_b1, B_w2, B_b2))
    return x + s * g
```

```python
import sys

NAME = "recurrent_scan__ssm_conv_s5__mixer_token_mlp__prompt"

L = 2048
D = 512
P = 512
F = 1792

WS_XN = 0x0000000
WS_H2 = 0x0200000
WS_G = 0x0400000
WS_BURE = 0x0600000
WS_BUIM = 0x0A00000
WS_E = 0x0E00000
WS_HS = 0x1000000
WS_PAR = 0x1400000
WS_SIZE = 268435456

KA_X, KA_LRE, KA_LIM, KA_BRE, KA_BIM, KA_CRE, KA_CIM, KA_LDT, KA_DSK = 0, 8, 16, 24, 32, 40, 48, 56, 64
KA_W1, KA_B1, KA_W2, KA_B2 = 80, 88, 96, 104
KA_OUT, KA_DBG, KA_WS = 112, 120, 128

F32_1_512 = 0x3B000000
F32_EPS = 0x3727C5AC
F32_LOG2E = 0x3FB8AA3B
F32_INV2PI = 0x3E22F983


class Asm:
    def __init__(self):
        self.lines = []

    def __call__(self, s):
        self.lines.append("  " + s)

    def label(self, s):
        self.lines.append(s + ":")

    def raw(self, s):
        self.lines.append(s)

    def text(self):
        return "\n".join(self.lines) + "\n"


def srd(a, sreg, ptr_lo, nbytes):
    a(f"s_mov_b32 s{sreg}, s{ptr_lo}")
    a(f"s_mov_b32 s{sreg+1}, s{ptr_lo+1}")
    a(f"s_mov_b32 s{sreg+2}, 0x{nbytes:x}")
    a(f"s_mov_b32 s{sreg+3}, 0x00020000")


def kernel_header(a, name):
    a.raw(".globl " + name)
    a.raw(".p2align 8")
    a.raw(f".type {name},@function")
    a.label(name)


def kernel_desc(name, vgpr, sgpr):
    acc = (vgpr + 3) // 4 * 4
    return "\n".join([
        ".p2align 6",
        f".amdhsa_kernel {name}",
        f"  .amdhsa_next_free_vgpr {vgpr}",
        f"  .amdhsa_next_free_sgpr {sgpr}",
        f"  .amdhsa_accum_offset {acc}",
        "  .amdhsa_group_segment_fixed_size 0",
        "  .amdhsa_kernarg_size 136",
        "  .amdhsa_user_sgpr_count 2",
        "  .amdhsa_user_sgpr_kernarg_segment_ptr 1",
        "  .amdhsa_system_sgpr_workgroup_id_x 1",
        ".end_amdhsa_kernel",
    ])


def wave_sum_to_sgpr(a, v, sdst):
    for sh in (1, 2, 4, 8):
        a("s_nop 1")
        a(f"v_add_f32_dpp v{v}, v{v}, v{v} row_shr:{sh} row_mask:0xf bank_mask:0xf bound_ctrl:0")
    a("s_nop 1")
    a(f"v_add_f32_dpp v{v}, v{v}, v{v} row_bcast:15 row_mask:0xa bank_mask:0xf")
    a("s_nop 1")
    a(f"v_add_f32_dpp v{v}, v{v}, v{v} row_bcast:31 row_mask:0xc bank_mask:0xf")
    a("s_nop 1")
    a(f"v_readlane_b32 s{sdst}, v{v}, 63")
    a("s_nop 3")


def bf16_round_inplace(a, v, tmp):
    a(f"v_cvt_pk_bf16_f32 v{tmp}, v{v}, v{v}")
    a(f"v_lshlrev_b32 v{v}, 16, v{tmp}")


def layernorm_regs(a, xin, tmp0, packed_out):
    t = tmp0
    a(f"v_add_f32 v{t}, v{xin}, v{xin+1}")
    for i in range(2, 8):
        a(f"v_add_f32 v{t}, v{t}, v{xin+i}")
    wave_sum_to_sgpr(a, t, 20)
    a(f"v_mov_b32 v{t+1}, s20")
    a(f"v_mul_f32 v{t+1}, 0x{F32_1_512:x}, v{t+1}")
    for i in range(8):
        a(f"v_sub_f32 v{t+2+i}, v{xin+i}, v{t+1}")
    a(f"v_mul_f32 v{t}, v{t+2}, v{t+2}")
    for i in range(1, 8):
        a(f"v_fmac_f32 v{t}, v{t+2+i}, v{t+2+i}")
    wave_sum_to_sgpr(a, t, 21)
    a(f"v_mov_b32 v{t}, s21")
    a(f"v_mul_f32 v{t}, 0x{F32_1_512:x}, v{t}")
    bf16_round_inplace(a, t, t+10)
    a(f"v_add_f32 v{t}, 0x{F32_EPS:x}, v{t}")
    bf16_round_inplace(a, t, t+10)
    a(f"v_sqrt_f32 v{t}, v{t}")
    a("s_nop 1")
    bf16_round_inplace(a, t, t+10)
    a(f"v_rcp_f32 v{t}, v{t}")
    a("s_nop 1")
    bf16_round_inplace(a, t+1, t+10)
    for i in range(8):
        a(f"v_sub_f32 v{t+2+i}, v{xin+i}, v{t+1}")
    for i in range(0, 8, 2):
        a(f"v_cvt_pk_bf16_f32 v{t+10}, v{t+2+i}, v{t+3+i}")
        a(f"v_lshlrev_b32 v{t+2+i}, 16, v{t+10}")
        a(f"v_and_b32 v{t+3+i}, 0xffff0000, v{t+10}")
    for i in range(8):
        a(f"v_mul_f32 v{t+2+i}, v{t+2+i}, v{t}")
    for i in range(0, 8, 2):
        a(f"v_cvt_pk_bf16_f32 v{packed_out+i//2}, v{t+2+i}, v{t+3+i}")
        a(f"v_lshlrev_b32 v{xin+i}, 16, v{packed_out+i//2}")
        a(f"v_and_b32 v{xin+i+1}, 0xffff0000, v{packed_out+i//2}")


def gen_ln(a):
    name = "ln_kernel"
    kernel_header(a, name)
    a(f"s_load_dwordx2 s[4:5], s[0:1], {KA_X}")
    a(f"s_load_dwordx2 s[6:7], s[0:1], {KA_WS}")
    a("s_cmp_ge_u32 s2, 513")
    a("s_cbranch_scc1 ln_end")
    a("s_cmp_eq_u32 s2, 512")
    a("s_cbranch_scc1 ln_params")
    a("v_lshrrev_b32 v1, 6, v0")
    a("s_nop 1")
    a("v_readfirstlane_b32 s3, v1")
    a("s_lshl_b32 s16, s2, 2")
    a("s_nop 2")
    a("s_add_u32 s16, s16, s3")
    a("s_lshl_b32 s16, s16, 10")
    a("v_and_b32 v1, 63, v0")
    a("v_lshlrev_b32 v1, 4, v1")
    a("s_waitcnt lgkmcnt(0)")
    srd(a, 8, 4, L * D * 2)
    srd(a, 12, 6, WS_SIZE)
    a("buffer_load_dwordx4 v[4:7], v1, s[8:11], s16 offen")
    a("s_waitcnt vmcnt(0)")
    for i in range(4):
        a(f"v_lshlrev_b32 v{8+2*i}, 16, v{4+i}")
        a(f"v_and_b32 v{9+2*i}, 0xffff0000, v{4+i}")
    layernorm_regs(a, 8, 16, 4)
    a(f"s_add_u32 s17, s16, 0x{WS_XN:x}")
    a("buffer_store_dwordx4 v[4:7], v1, s[12:15], s17 offen")
    layernorm_regs(a, 8, 16, 32)
    a(f"s_add_u32 s17, s16, 0x{WS_H2:x}")
    a("buffer_store_dwordx4 v[32:35], v1, s[12:15], s17 offen")
    a("s_branch ln_end")

    a.label("ln_params")
    a(f"s_load_dwordx2 s[16:17], s[0:1], {KA_LRE}")
    a(f"s_load_dwordx2 s[18:19], s[0:1], {KA_LIM}")
    a(f"s_load_dwordx2 s[20:21], s[0:1], {KA_LDT}")
    a("s_waitcnt lgkmcnt(0)")
    srd(a, 8, 16, P * 2)
    srd(a, 24, 18, P * 2)
    srd(a, 28, 20, P * 2)
    srd(a, 12, 6, WS_SIZE)
    a(f"s_mov_b32 s22, 0x{WS_PAR:x}")
    for it in range(2):
        a(f"v_add_u32 v1, {256*it}, v0")
        a("v_lshlrev_b32 v2, 1, v1")
        a("buffer_load_ushort v4, v2, s[8:11], 0 offen")
        a("buffer_load_ushort v5, v2, s[24:27], 0 offen")
        a("buffer_load_ushort v6, v2, s[28:31], 0 offen")
        a("s_waitcnt vmcnt(0)")
        a("v_lshlrev_b32 v4, 16, v4")
        a("v_lshlrev_b32 v5, 16, v5")
        a("v_lshlrev_b32 v6, 16, v6")
        a(f"v_mul_f32 v6, 0x{F32_LOG2E:x}, v6")
        a("v_exp_f32 v6, v6")
        a("s_nop 1")
        bf16_round_inplace(a, 6, 20)
        a("v_mul_f32 v7, v6, v4")
        a("v_mul_f32 v8, v6, v5")
        a(f"v_mul_f32 v7, 0x{F32_LOG2E:x}, v7")
        a("v_exp_f32 v7, v7")
        a(f"v_mul_f32 v8, 0x{F32_INV2PI:x}, v8")
        a("v_fract_f32 v8, v8")
        a("v_sin_f32 v9, v8")
        a("v_cos_f32 v10, v8")
        a("s_nop 1")
        a("v_mul_f32 v11, v7, v10")
        a("v_mul_f32 v12, v7, v9")
        a("v_add_f32 v13, -1.0, v11")
        a("v_mul_f32 v14, v4, v4")
        a("v_fmac_f32 v14, v5, v5")
        a("v_rcp_f32 v14, v14")
        a("v_mul_f32 v15, v13, v4")
        a("v_fmac_f32 v15, v12, v5")
        a("v_mul_f32 v16, v12, v4")
        a("v_mul_f32 v17, v13, v5")
        a("v_sub_f32 v16, v16, v17")
        a("v_mul_f32 v15, v15, v14")
        a("v_mul_f32 v16, v16, v14")
        a("v_mov_b32 v17, v11")
        a("v_mov_b32 v18, v12")
        for _ in range(5):
            a("v_mul_f32 v19, v17, v17")
            a("v_mul_f32 v20, v18, v18")
            a("v_sub_f32 v19, v19, v20")
            a("v_mul_f32 v18, v17, v18")
            a("v_add_f32 v18, v18, v18")
            a("v_mov_b32 v17, v19")
        a("v_lshlrev_b32 v2, 2, v1")
        for k, reg in enumerate((11, 12, 15, 16, 17, 18)):
            a(f"v_add_u32 v3, {k*2048}, v2")
            a(f"buffer_store_dword v{reg}, v3, s[12:15], s22 offen")
    a.label("ln_end")
    a("s_endpgm")
    return name, 40, 32


V_ACC = 16
V_FRAG = 48
V_VOFF = 72
V_RD = 84
V_EPI = 110
S_WBASE = 40
S_SOFF = 32


def emit_lane_ids(a):
    a("v_lshrrev_b32 v1, 6, v0")
    a("s_nop 1")
    a("v_readfirstlane_b32 s3, v1")
    a("v_and_b32 v1, 63, v0")
    a("v_lshrrev_b32 v2, 5, v1")
    a("v_and_b32 v3, 31, v1")
    a("s_nop 2")
    a(f"s_lshl_b32 s{S_WBASE}, s3, 11")


def emit_dma_voff(a, blk, typ, ld):
    for q in range(2):
        vd = V_VOFF + 2 * blk + q
        a("v_lshrrev_b32 v4, 3, v1")
        a(f"v_lshl_add_u32 v4, s3, 4, v4")
        if q:
            a("v_add_u32 v4, 8, v4")
        a("v_lshrrev_b32 v5, 1, v4")
        if typ == "N":
            a("v_and_b32 v5, 7, v5")
        else:
            a("v_and_b32 v5, 1, v5")
            a("v_lshlrev_b32 v5, 2, v5")
        a("v_and_b32 v6, 7, v1")
        a("v_xor_b32 v5, v5, v6")
        a("v_lshlrev_b32 v5, 4, v5")
        a(f"s_mov_b32 s44, {ld}")
        a("v_mul_lo_u32 v4, v4, s44")
        a(f"v_add_u32 v{vd}, v4, v5")
        if q:
            a(f"v_subrev_u32 v{vd}, 1024, v{vd}")


def emit_rd_addr(a, base_reg, typ, wsel, hi_copy=None):
    if typ == "N":
        a(f"v_lshl_add_u32 v4, s{wsel}, 5, v3")
        a("v_lshrrev_b32 v5, 1, v4")
        a("v_and_b32 v5, 7, v5")
        a("v_lshlrev_b32 v4, 7, v4")
        for j in range(4):
            a(f"v_add_u32 v6, {2*j}, v2")
            a("v_xor_b32 v6, v6, v5")
            a(f"v_lshl_add_u32 v{base_reg+j}, v6, 4, v4")
        n = 4
    else:
        a("v_and_b32 v4, 15, v1")
        a("v_lshrrev_b32 v4, 2, v4")
        a("v_lshl_add_u32 v5, v2, 3, v4")
        a("v_lshlrev_b32 v5, 7, v5")
        a("v_lshrrev_b32 v6, 1, v4")
        a("v_and_b32 v6, 1, v6")
        a("v_lshlrev_b32 v6, 2, v6")
        a("v_lshrrev_b32 v7, 4, v1")
        a("v_and_b32 v7, 1, v7")
        a("v_lshlrev_b32 v7, 1, v7")
        a(f"v_lshl_add_u32 v7, s{wsel}, 2, v7")
        a("v_and_b32 v8, 3, v1")
        a("v_lshrrev_b32 v9, 1, v8")
        a("v_add_u32 v7, v7, v9")
        a("v_xor_b32 v7, v7, v6")
        a("v_lshl_add_u32 v5, v7, 4, v5")
        a("v_and_b32 v8, 1, v8")
        a(f"v_lshl_add_u32 v{base_reg}, v8, 3, v5")
        n = 1
    if hi_copy is not None:
        for j in range(n):
            a(f"v_add_u32 v{hi_copy[0]+j}, 0x{hi_copy[1]:x}, v{base_reg+j}")


class Operand:
    def __init__(self, blk, typ, rd, rd_hi=None, hi_add=0):
        self.blk, self.typ, self.rd, self.rd_hi, self.hi_add = blk, typ, rd, rd_hi, hi_add

    def emit_read(self, a, dst, slot_base, j):
        off = slot_base + self.blk * 8192
        if self.typ == "N":
            reg = self.rd + j
            offs = [(off, dst, "ds_read_b128 v[%d:%d]" % (dst, dst + 3))]
        else:
            reg = self.rd
            offs = [(off + (16 * j) * 128, dst, "ds_read_b64_tr_b16 v[%d:%d]" % (dst, dst + 1)),
                    (off + (16 * j + 4) * 128, dst + 2, "ds_read_b64_tr_b16 v[%d:%d]" % (dst + 2, dst + 3))]
        for o, _, ins in offs:
            r = reg
            if o > 65535:
                assert self.rd_hi is not None
                r = self.rd_hi + (j if self.typ == "N" else 0)
                o -= self.hi_add
            assert 0 <= o <= 65535
            a(f"{ins}, v{r} offset:{o}")
        return len(offs)


def gemm_mainloop(a, stages, nslots, slot_size, pd):
    n = len(stages)

    def issue(s):
        st = stages[s]
        slot = s % nslots
        for (srd_, vb, so, inc, lblk) in st["loads"]:
            a(f"s_add_u32 m0, s{S_WBASE}, {slot*slot_size + lblk*8192}")
            a("s_nop 0")
            a(f"buffer_load_dwordx4 v{V_VOFF+2*vb}, s[{srd_}:{srd_+3}], s{so} offen lds")
            a(f"buffer_load_dwordx4 v{V_VOFF+2*vb+1}, s[{srd_}:{srd_+3}], s{so} offen offset:1024 lds")
            if inc:
                a(f"s_add_u32 s{so}, s{so}, 0x{inc:x}")

    for s in range(min(pd, n)):
        issue(s)
    for s in range(n):
        st = stages[s]
        slot = s % nslots
        outstanding = sum(2 * len(stages[t]["loads"]) for t in range(s + 1, min(s + pd, n)))
        a(f"s_waitcnt vmcnt({outstanding})")
        a("s_barrier")
        if s + pd < n:
            issue(s + pd)
        ops = st["ops"]
        nreads = 0
        for o, op in enumerate(ops):
            nreads += op.emit_read(a, V_FRAG + 4 * o, slot * slot_size, 0)
        for j in range(4):
            cur = V_FRAG + 12 * (j % 2)
            nxt = V_FRAG + 12 * ((j + 1) % 2)
            if j < 3:
                nn = 0
                for o, op in enumerate(ops):
                    nn += op.emit_read(a, nxt + 4 * o, slot * slot_size, j + 1)
                a(f"s_waitcnt lgkmcnt({nn})")
            else:
                a("s_waitcnt lgkmcnt(0)")
            for (acc, ia, ib) in st["mfmas"]:
                A = cur + 4 * ia
                B = cur + 4 * ib
                a(f"v_mfma_f32_32x32x16_bf16 v[{acc}:{acc+15}], v[{A}:{A+3}], v[{B}:{B+3}], v[{acc}:{acc+15}]")


def zero_acc(a, n):
    for i in range(n):
        a(f"v_mov_b32 v{V_ACC+i}, 0")


def gen_c1(a):
    name = "c1_kernel"
    kernel_header(a, name)
    a("s_cmp_ge_u32 s2, 256")
    a("s_cbranch_scc1 c1_end")
    a(f"s_load_dwordx2 s[4:5], s[0:1], {KA_BRE}")
    a(f"s_load_dwordx2 s[6:7], s[0:1], {KA_BIM}")
    a(f"s_load_dwordx2 s[20:21], s[0:1], {KA_WS}")
    emit_lane_ids(a)
    a("s_and_b32 s45, s2, 7")
    a("s_lshr_b32 s46, s2, 3")
    a("s_lshr_b32 s47, s3, 1")
    a("s_and_b32 s48, s3, 1")
    a("s_waitcnt lgkmcnt(0)")
    srd(a, 8, 4, P * D * 2)
    srd(a, 12, 6, P * D * 2)
    srd(a, 16, 20, WS_SIZE)
    a("s_lshl_b32 s49, s45, 6")
    a("s_lshl_b32 s50, s48, 5")
    a("s_add_u32 s49, s49, s50")
    a("v_add_u32 v4, s49, v3")
    a(f"v_lshlrev_b32 v{V_EPI+8}, 2, v4")
    a(f"s_mov_b32 s51, 0x{WS_PAR:x}")
    for k in range(4):
        a(f"v_add_u32 v5, {k*2048}, v{V_EPI+8}")
        a(f"buffer_load_dword v{V_EPI+k}, v5, s[16:19], s51 offen")
    emit_dma_voff(a, 0, "N", 1024)
    emit_dma_voff(a, 1, "N", 1024)
    emit_dma_voff(a, 2, "N", 1024)
    HI = 40960
    emit_rd_addr(a, V_RD + 0, "N", 47, (V_RD + 12, HI))
    emit_rd_addr(a, V_RD + 4, "N", 48, (V_RD + 16, HI))
    a(f"s_lshl_b32 s{S_SOFF}, s46, 16")
    a(f"s_add_u32 s{S_SOFF}, s{S_SOFF}, 0x{WS_XN:x}")
    a(f"s_lshl_b32 s{S_SOFF+1}, s45, 16")
    a(f"s_mov_b32 s{S_SOFF+2}, s{S_SOFF+1}")
    zero_acc(a, 32)
    opA = Operand(0, "N", V_RD + 0, V_RD + 12, HI)
    opBr = Operand(1, "N", V_RD + 4, V_RD + 16, HI)
    opBi = Operand(2, "N", V_RD + 4, V_RD + 16, HI)
    stages = []
    for s in range(8):
        stages.append(dict(loads=[(16, 0, S_SOFF, 128, 0), (8, 1, S_SOFF + 1, 128, 1), (12, 2, S_SOFF + 2, 128, 2)],
                           ops=[opA, opBr, opBi], mfmas=[(V_ACC, 0, 1), (V_ACC + 16, 0, 2)]))
    gemm_mainloop(a, stages, 3, 24576, 2)
    a("s_nop 15")
    a("s_nop 7")
    ar, ai, cr, ci = V_EPI, V_EPI + 1, V_EPI + 2, V_EPI + 3
    t0, t1 = V_EPI + 9, V_EPI + 10
    for i in range(16):
        re, im = V_ACC + i, V_ACC + 16 + i
        a(f"v_mul_f32 v{t0}, v{cr}, v{re}")
        a(f"v_mul_f32 v{t1}, v{cr}, v{im}")
        a(f"v_fmac_f32 v{t1}, v{ci}, v{re}")
        a(f"v_fma_f32 v{re}, -v{ci}, v{im}, v{t0}")
        a(f"v_mov_b32 v{im}, v{t1}")
    a("s_lshl_b32 s52, s46, 6")
    a("s_lshl_b32 s53, s47, 5")
    a("s_add_u32 s52, s52, s53")
    a(f"v_lshl_add_u32 v4, v2, 2, s52")
    a(f"v_lshl_add_u32 v4, v4, 11, v{V_EPI+8}")
    a(f"s_mov_b32 s54, 0x{WS_BURE:x}")
    a(f"s_mov_b32 s55, 0x{WS_BUIM:x}")
    for i in range(16):
        roff = (8 * (i // 4) + i % 4) * 2048
        a(f"v_add_u32 v5, 0x{roff:x}, v4")
        a(f"buffer_store_dword v{V_ACC+i}, v5, s[16:19], s54 offen")
        a(f"buffer_store_dword v{V_ACC+16+i}, v5, s[16:19], s55 offen")
    a2r, a2i, a4r, a4i, a5r, a5i = [V_EPI + 11 + k for k in range(6)]
    Tr, Ti, t2 = V_EPI + 18, V_EPI + 19, V_EPI + 20

    def cmul(dr, di, xr, xi, yr, yi):
        a(f"v_mul_f32 v{t0}, v{xr}, v{yr}")
        a(f"v_mul_f32 v{t1}, v{xr}, v{yi}")
        a(f"v_fma_f32 v{t0}, -v{xi}, v{yi}, v{t0}")
        a(f"v_fmac_f32 v{t1}, v{xi}, v{yr}")
        a(f"v_mov_b32 v{dr}, v{t0}")
        a(f"v_mov_b32 v{di}, v{t1}")
    cmul(a2r, a2i, ar, ai, ar, ai)
    cmul(a4r, a4i, a2r, a2i, a2r, a2i)
    cmul(a5r, a5i, a4r, a4i, ar, ai)
    a(f"v_mov_b32 v{Tr}, v{V_ACC}")
    a(f"v_mov_b32 v{Ti}, v{V_ACC+16}")
    for i in range(1, 16):
        mr, mi = (a5r, a5i) if i % 4 == 0 else (ar, ai)
        a(f"v_fma_f32 v{t0}, v{mr}, v{Tr}, v{V_ACC+i}")
        a(f"v_fma_f32 v{t1}, v{mr}, v{Ti}, v{V_ACC+16+i}")
        a(f"v_fma_f32 v{t0}, -v{mi}, v{Ti}, v{t0}")
        a(f"v_fma_f32 v{Ti}, v{mi}, v{Tr}, v{t1}")
        a(f"v_mov_b32 v{Tr}, v{t0}")
    cmul(t2, t2 + 1, Tr, Ti, a4r, a4i)
    a("v_cmp_eq_u32 vcc, 0, v2")
    a("s_nop 3")
    a(f"v_cndmask_b32 v{Tr}, v{Tr}, v{t2}, vcc")
    a(f"v_cndmask_b32 v{Ti}, v{Ti}, v{t2+1}, vcc")
    a("s_lshl_b32 s52, s46, 1")
    a("s_add_u32 s52, s52, s47")
    a("s_lshl_b32 s52, s52, 1")
    a("v_add_u32 v4, s52, v2")
    a(f"v_lshlrev_b32 v4, 12, v4")
    a(f"v_lshl_add_u32 v4, v{V_EPI+8}, 1, v4")
    a(f"s_mov_b32 s54, 0x{WS_E:x}")
    a(f"buffer_store_dwordx2 v[{Tr}:{Ti}], v4, s[16:19], s54 offen")
    a.label("c1_end")
    a("s_endpgm")
    return name, 136, 64


def gen_mid(a):
    name = "mid_kernel"
    kernel_header(a, name)
    a("s_cmp_ge_u32 s2, 352")
    a("s_cbranch_scc1 mid_end")
    a("s_cmp_ge_u32 s2, 224")
    a("s_cbranch_scc1 mid_scan")
    a(f"s_load_dwordx2 s[4:5], s[0:1], {KA_W1}")
    a(f"s_load_dwordx2 s[6:7], s[0:1], {KA_B1}")
    a(f"s_load_dwordx2 s[20:21], s[0:1], {KA_WS}")
    emit_lane_ids(a)
    a("s_and_b32 s45, s2, 7")
    a("s_lshr_b32 s46, s2, 3")
    a("s_mul_i32 s47, s46, 37")
    a("s_lshr_b32 s47, s47, 8")
    a("s_mul_i32 s48, s47, 7")
    a("s_sub_u32 s48, s46, s48")
    a("s_lshr_b32 s49, s45, 2")
    a("s_lshl_b32 s49, s49, 2")
    a("s_add_u32 s49, s49, s47")
    a("s_and_b32 s50, s45, 3")
    a("s_mul_i32 s50, s50, 7")
    a("s_add_u32 s50, s50, s48")
    a("s_lshr_b32 s47, s3, 1")
    a("s_and_b32 s48, s3, 1")
    a("s_waitcnt lgkmcnt(0)")
    srd(a, 8, 4, L * F * 2)
    srd(a, 12, 6, F * 2)
    srd(a, 16, 20, WS_SIZE)
    a("s_lshl_b32 s51, s50, 6")
    a("s_lshl_b32 s52, s48, 5")
    a("s_add_u32 s51, s51, s52")
    a("v_add_u32 v4, s51, v3")
    a(f"v_lshlrev_b32 v{V_EPI+1}, 1, v4")
    a(f"buffer_load_ushort v{V_EPI}, v{V_EPI+1}, s[12:15], 0 offen")
    emit_dma_voff(a, 0, "T", 1024)
    emit_dma_voff(a, 1, "T", F * 2)
    emit_rd_addr(a, V_RD + 0, "T", 47)
    emit_rd_addr(a, V_RD + 1, "T", 48)
    a(f"s_lshl_b32 s{S_SOFF}, s49, 7")
    a(f"s_add_u32 s{S_SOFF}, s{S_SOFF}, 0x{WS_H2:x}")
    a(f"s_lshl_b32 s{S_SOFF+1}, s50, 7")
    zero_acc(a, 16)
    opA = Operand(0, "T", V_RD + 0)
    opB = Operand(1, "T", V_RD + 1)
    stages = []
    for s in range(L // 64):
        stages.append(dict(loads=[(16, 0, S_SOFF, 64 * 1024, 0), (8, 1, S_SOFF + 1, 64 * F * 2, 1)],
                           ops=[opA, opB], mfmas=[(V_ACC, 0, 1)]))
    gemm_mainloop(a, stages, 4, 16384, 3)
    a("s_nop 15")
    a("s_nop 7")
    b1 = V_EPI
    a(f"v_lshlrev_b32 v{b1}, 16, v{b1}")
    t0, t1, t2 = V_EPI + 2, V_EPI + 3, V_EPI + 4
    a("s_lshl_b32 s52, s49, 6")
    a("s_lshl_b32 s53, s47, 5")
    a("s_add_u32 s52, s52, s53")
    a(f"v_lshl_add_u32 v4, v2, 2, s52")
    a(f"s_movk_i32 s53, {F*2}")
    a(f"v_mul_lo_u32 v4, v4, s53")
    a(f"v_add_u32 v4, v4, v{V_EPI+1}")
    a(f"s_mov_b32 s54, 0x{WS_G:x}")
    a("s_mov_b32 s55, 0x3f4c422a")
    a("s_mov_b32 s56, 0x3d372713")
    a("s_mov_b32 s57, 0x4038aa3b")
    for i in range(16):
        r = V_ACC + i
        bf16_round_inplace(a, r, t0)
        a(f"v_add_f32 v{r}, v{r}, v{b1}")
        bf16_round_inplace(a, r, t0)
        a(f"v_mul_f32 v{t0}, v{r}, v{r}")
        a(f"v_mul_f32 v{t0}, v{t0}, v{r}")
        a(f"v_fma_f32 v{t0}, s56, v{t0}, v{r}")
        a(f"v_mul_f32 v{t0}, s55, v{t0}")
        a(f"v_mul_f32 v{t0}, s57, v{t0}")
        a(f"v_exp_f32 v{t0}, v{t0}")
        a("s_nop 0")
        a(f"v_add_f32 v{t0}, 1.0, v{t0}")
        a(f"v_rcp_f32 v{t0}, v{t0}")
        a("s_nop 0")
        a(f"v_fma_f32 v{t0}, -2.0, v{t0}, 1.0")
        a(f"v_add_f32 v{t0}, 1.0, v{t0}")
        a(f"v_mul_f32 v{t0}, 0.5, v{t0}")
        a(f"v_mul_f32 v{t0}, v{t0}, v{r}")
        a(f"v_cvt_pk_bf16_f32 v{t0}, v{t0}, v{t0}")
        roff = (8 * (i // 4) + i % 4) * F * 2
        a(f"v_add_u32 v{t1}, 0x{roff:x}, v4")
        a(f"buffer_store_short v{t0}, v{t1}, s[16:19], s54 offen")
    a("s_branch mid_end")

    a.label("mid_scan")
    a(f"s_load_dwordx2 s[20:21], s[0:1], {KA_WS}")
    a("s_sub_u32 s22, s2, 224")
    a("s_lshr_b32 s23, s22, 1")
    a("s_and_b32 s24, s22, 1")
    a("s_lshl_b32 s24, s24, 8")
    a("v_add_u32 v1, s24, v0")
    a("s_waitcnt lgkmcnt(0)")
    srd(a, 16, 20, WS_SIZE)
    a("v_lshlrev_b32 v2, 2, v1")
    a(f"s_mov_b32 s25, 0x{WS_PAR:x}")
    for k, reg in ((0, 4), (1, 5), (4, 6), (5, 7)):
        a(f"v_add_u32 v3, {k*2048}, v2")
        a(f"buffer_load_dword v{reg}, v3, s[16:19], s25 offen")
    a("s_lshl_b32 s26, s23, 16")
    a(f"s_add_u32 s27, s26, 0x{WS_BURE:x}")
    a(f"s_add_u32 s28, s26, 0x{WS_BUIM:x}")
    for j in range(32):
        a(f"v_add_u32 v3, {j*2048}, v2")
        a(f"buffer_load_dword v{16+j}, v3, s[16:19], s27 offen")
        a(f"buffer_load_dword v{48+j}, v3, s[16:19], s28 offen")
    a("v_mov_b32 v8, 0")
    a("v_mov_b32 v9, 0")
    a("v_lshlrev_b32 v3, 3, v1")
    a("v_add_u32 v80, 4096, v3")
    a(f"s_mov_b32 s29, 0x{WS_E:x}")
    a("s_mov_b32 s30, 0")
    a.label("mid_carry")
    a("s_cmp_ge_u32 s30, s23")
    a("s_cbranch_scc1 mid_carry_done")
    a("buffer_load_dwordx2 v[10:11], v3, s[16:19], s29 offen")
    a("buffer_load_dwordx2 v[12:13], v80, s[16:19], s29 offen")
    a("s_waitcnt vmcnt(0)")
    a("v_add_f32 v10, v10, v12")
    a("v_add_f32 v11, v11, v13")
    a("v_fma_f32 v14, v6, v8, v10")
    a("v_fma_f32 v15, v6, v9, v11")
    a("v_fma_f32 v14, -v7, v9, v14")
    a("v_fma_f32 v9, v7, v8, v15")
    a("v_mov_b32 v8, v14")
    a("s_add_u32 s29, s29, 8192")
    a("s_add_u32 s30, s30, 1")
    a("s_branch mid_carry")
    a.label("mid_carry_done")
    a("s_waitcnt vmcnt(0)")
    a("s_lshl_b32 s26, s23, 16")
    a(f"s_add_u32 s26, s26, 0x{WS_HS:x}")
    a("v_lshlrev_b32 v3, 1, v1")
    for j in range(32):
        a(f"v_fma_f32 v14, v4, v8, v{16+j}")
        a(f"v_fma_f32 v15, v4, v9, v{48+j}")
        a("v_fma_f32 v14, -v5, v9, v14")
        a("v_fma_f32 v9, v5, v8, v15")
        a("v_mov_b32 v8, v14")
        a("v_cvt_pk_bf16_f32 v10, v8, v8")
        a("v_xor_b32 v11, 0x80000000, v9")
        a("v_cvt_pk_bf16_f32 v11, v11, v11")
        a(f"v_add_u32 v12, {j*2048}, v3")
        a("buffer_store_short v10, v12, s[16:19], s26 offen")
        a("buffer_store_short v11, v12, s[16:19], s26 offen offset:1024")
    a.label("mid_end")
    a("s_endpgm")
    return name, 128, 64


def gen_fin(a):
    name = "fin_kernel"
    kernel_header(a, name)
    a("s_cmp_ge_u32 s2, 256")
    a("s_cbranch_scc1 fin_end")
    a(f"s_load_dwordx2 s[4:5], s[0:1], {KA_W2}")
    a(f"s_load_dwordx2 s[6:7], s[0:1], {KA_CRE}")
    a(f"s_load_dwordx2 s[56:57], s[0:1], {KA_CIM}")
    a(f"s_load_dwordx2 s[58:59], s[0:1], {KA_WS}")
    a(f"s_load_dwordx2 s[60:61], s[0:1], {KA_X}")
    a(f"s_load_dwordx2 s[62:63], s[0:1], {KA_OUT}")
    a(f"s_load_dwordx2 s[64:65], s[0:1], {KA_B2}")
    a(f"s_load_dwordx2 s[66:67], s[0:1], {KA_DSK}")
    emit_lane_ids(a)
    a("s_and_b32 s45, s2, 7")
    a("s_lshr_b32 s46, s2, 3")
    a("s_lshr_b32 s49, s46, 3")
    a("s_lshl_b32 s50, s45, 2")
    a("s_add_u32 s49, s49, s50")
    a("s_and_b32 s50, s46, 7")
    a("s_lshr_b32 s47, s3, 1")
    a("s_and_b32 s48, s3, 1")
    a("s_waitcnt lgkmcnt(0)")
    srd(a, 8, 4, F * L * 2)
    srd(a, 12, 6, D * P * 2)
    srd(a, 16, 58, WS_SIZE)
    srd(a, 20, 56, D * P * 2)
    srd(a, 24, 60, L * D * 2)
    srd(a, 28, 62, L * D * 4)
    srd(a, 68, 64, L * 2)
    srd(a, 72, 66, D * 2)
    a("s_lshl_b32 s51, s50, 6")
    a("s_lshl_b32 s52, s48, 5")
    a("s_add_u32 s51, s51, s52")
    a("v_add_u32 v4, s51, v3")
    a(f"v_lshlrev_b32 v5, 1, v4")
    a(f"buffer_load_ushort v{V_EPI}, v5, s[72:75], 0 offen")
    a("s_lshl_b32 s52, s49, 6")
    a("s_lshl_b32 s53, s47, 5")
    a("s_add_u32 s52, s52, s53")
    a(f"v_lshl_add_u32 v6, v2, 2, s52")
    a(f"v_lshl_add_u32 v{V_EPI+1}, v6, 10, v5")
    a(f"v_lshlrev_b32 v{V_EPI+2}, 1, v6")
    a(f"s_mov_b32 s54, 0x{WS_XN:x}")
    for i in range(16):
        ro = 8 * (i // 4) + i % 4
        a(f"v_add_u32 v7, {ro*1024}, v{V_EPI+1}")
        a(f"buffer_load_ushort v{V_EPI+4+i}, v7, s[24:27], 0 offen")
        a(f"buffer_load_ushort v{V_EPI+20+i}, v7, s[16:19], s54 offen")
        a(f"buffer_load_ushort v{V_EPI+36+i}, v{V_EPI+2}, s[68:71], 0 offen offset:{ro*2}")
    emit_dma_voff(a, 0, "T", L * 2)
    emit_dma_voff(a, 1, "N", F * 2)
    emit_dma_voff(a, 2, "N", 2048)
    emit_dma_voff(a, 3, "N", 1024)
    emit_rd_addr(a, V_RD + 0, "T", 47)
    emit_rd_addr(a, V_RD + 1, "N", 48)
    emit_rd_addr(a, V_RD + 5, "N", 47)
    a(f"s_lshl_b32 s{S_SOFF}, s49, 7")
    a(f"s_mul_i32 s{S_SOFF+1}, s50, {64*F*2}")
    a(f"s_add_u32 s{S_SOFF+1}, s{S_SOFF+1}, 0x{WS_G:x}")
    a(f"s_lshl_b32 s{S_SOFF+2}, s49, 17")
    a(f"s_add_u32 s{S_SOFF+2}, s{S_SOFF+2}, 0x{WS_HS:x}")
    a(f"s_lshl_b32 s{S_SOFF+3}, s50, 16")
    a(f"s_mov_b32 s{S_SOFF+4}, s{S_SOFF+3}")
    zero_acc(a, 32)
    opA1 = Operand(0, "T", V_RD + 0)
    opB1 = Operand(1, "N", V_RD + 1)
    opA2 = Operand(0, "N", V_RD + 5)
    opB2 = Operand(1, "N", V_RD + 1)
    stages = []
    for s in range(F // 64):
        stages.append(dict(loads=[(8, 0, S_SOFF, 64 * L * 2, 0), (16, 1, S_SOFF + 1, 128, 1)],
                           ops=[opA1, opB1], mfmas=[(V_ACC, 0, 1)]))
    for s in range(16):
        csrd, cso = (12, S_SOFF + 3) if s < 8 else (20, S_SOFF + 4)
        stages.append(dict(loads=[(16, 2, S_SOFF + 2, 128, 0), (csrd, 3, cso, 128, 1)],
                           ops=[opA2, opB2], mfmas=[(V_ACC + 16, 0, 1)]))
    gemm_mainloop(a, stages, 4, 16384, 3)
    a("s_nop 15")
    a("s_nop 7")
    dsk = V_EPI
    a(f"v_lshlrev_b32 v{dsk}, 16, v{dsk}")
    t0, t1 = V_EPI + 52, V_EPI + 53
    a(f"v_lshlrev_b32 v{V_EPI+3}, 1, v{V_EPI+1}")
    a(f"s_mov_b32 s55, 0x{F32_LOG2E:x}")
    for i in range(16):
        y, sv = V_ACC + i, V_ACC + 16 + i
        xx, xn, b2 = V_EPI + 4 + i, V_EPI + 20 + i, V_EPI + 36 + i
        a(f"v_lshlrev_b32 v{xx}, 16, v{xx}")
        a(f"v_lshlrev_b32 v{xn}, 16, v{xn}")
        a(f"v_lshlrev_b32 v{b2}, 16, v{b2}")
        bf16_round_inplace(a, y, t0)
        a(f"v_add_f32 v{y}, v{y}, v{b2}")
        bf16_round_inplace(a, y, t0)
        a(f"v_mul_f32 v{t0}, s55, v{y}")
        a(f"v_exp_f32 v{t0}, -v{t0}")
        a("s_nop 0")
        a(f"v_add_f32 v{t0}, 1.0, v{t0}")
        a(f"v_rcp_f32 v{t0}, v{t0}")
        a("s_nop 0")
        a(f"v_mul_f32 v{y}, v{y}, v{t0}")
        bf16_round_inplace(a, y, t0)
        a(f"v_mul_f32 v{xn}, v{xn}, v{dsk}")
        bf16_round_inplace(a, xn, t0)
        a(f"v_fma_f32 v{sv}, 2.0, v{sv}, v{xn}")
        a(f"v_fma_f32 v{sv}, v{sv}, v{y}, v{xx}")
        ro = 8 * (i // 4) + i % 4
        a(f"v_add_u32 v{t1}, {ro*2048}, v{V_EPI+3}")
        a(f"buffer_store_dword v{sv}, v{t1}, s[28:31], 0 offen")
    a.label("fin_end")
    a("s_endpgm")
    return name, 168, 80

def build(kernels, launches):
    a = Asm()
    head = []
    for ln in launches:
        head.append(f"; @launch kernel={ln[0]} grid=({ln[1]},1,1) block=({ln[2]},1,1) lds={ln[3]}")
    head.append('.amdgcn_target "amdgcn-amd-amdhsa--gfx950"')
    head.append(".text")
    descs = []
    for g in kernels:
        name, vg, sg = g(a)
        descs.append(kernel_desc(name, vg, sg))
    out = "\n".join(head) + "\n" + a.text() + '.section .rodata,"a"\n' + "\n".join(descs) + "\n"
    return out


if __name__ == "__main__":
    which = sys.argv[1] if len(sys.argv) > 1 else "all"
    dst = sys.argv[2] if len(sys.argv) > 2 else f"cdna_kernels/{NAME}.s"
    kernels = [gen_ln, gen_c1, gen_mid, gen_fin]
    launches = [("ln_kernel", 513, 256, 0), ("c1_kernel", 256, 256, 73728), ("mid_kernel", 352, 256, 65536), ("fin_kernel", 256, 256, 65536)]
    open(dst, "w").write(build(kernels, launches))
    print("wrote", dst)
```

```python
import sys

NAME = "recurrent_scan__ssm_conv_s5__mixer_token_mlp__prompt"

L = 2048
D = 512
P = 512
F = 1792

WS_XN = 0x0000000
WS_H2 = 0x0200000
WS_G = 0x0400000
WS_BURE = 0x0600000
WS_BUIM = 0x0A00000
WS_E = 0x0E00000
WS_HS = 0x1000000
WS_PAR = 0x1400000
WS_SIZE = 268435456

KA_X, KA_LRE, KA_LIM, KA_BRE, KA_BIM, KA_CRE, KA_CIM, KA_LDT, KA_DSK = 0, 8, 16, 24, 32, 40, 48, 56, 64
KA_W1, KA_B1, KA_W2, KA_B2 = 80, 88, 96, 104
KA_OUT, KA_DBG, KA_WS = 112, 120, 128

F32_1_512 = 0x3B000000
F32_EPS = 0x3727C5AC
F32_LOG2E = 0x3FB8AA3B
F32_INV2PI = 0x3E22F983


class Asm:
    def __init__(self):
        self.lines = []

    def __call__(self, s):
        self.lines.append("  " + s)

    def label(self, s):
        self.lines.append(s + ":")

    def raw(self, s):
        self.lines.append(s)

    def text(self):
        return "\n".join(self.lines) + "\n"


def srd(a, sreg, ptr_lo, nbytes):
    a(f"s_mov_b32 s{sreg}, s{ptr_lo}")
    a(f"s_mov_b32 s{sreg+1}, s{ptr_lo+1}")
    a(f"s_mov_b32 s{sreg+2}, 0x{nbytes:x}")
    a(f"s_mov_b32 s{sreg+3}, 0x00020000")


def kernel_header(a, name):
    a.raw(".globl " + name)
    a.raw(".p2align 8")
    a.raw(f".type {name},@function")
    a.label(name)


def kernel_desc(name, vgpr, sgpr):
    acc = (vgpr + 3) // 4 * 4
    return "\n".join([
        ".p2align 6",
        f".amdhsa_kernel {name}",
        f"  .amdhsa_next_free_vgpr {vgpr}",
        f"  .amdhsa_next_free_sgpr {sgpr}",
        f"  .amdhsa_accum_offset {acc}",
        "  .amdhsa_group_segment_fixed_size 0",
        "  .amdhsa_kernarg_size 136",
        "  .amdhsa_user_sgpr_count 2",
        "  .amdhsa_user_sgpr_kernarg_segment_ptr 1",
        "  .amdhsa_system_sgpr_workgroup_id_x 1",
        ".end_amdhsa_kernel",
    ])


WS_DBG = 0x1800000
STAMP = {"on": False, "n": 0}


def stamp(a, srd_ws):
    if not STAMP["on"]:
        return
    idx = STAMP["n"]
    STAMP["n"] += 1
    a("s_memtime s[90:91]")
    a("s_waitcnt lgkmcnt(0)")
    a("v_mov_b32 v200, s90")
    a("v_mov_b32 v201, s91")
    a("s_lshl_b32 s92, s2, 8")
    a(f"s_add_u32 s92, s92, 0x{WS_DBG:x}")
    a(f"s_add_u32 s92, s92, {idx*8}")
    a("v_mov_b32 v202, 0")
    a("v_cmp_eq_u32 vcc, 0, v0")
    a("s_and_saveexec_b64 s[94:95], vcc")
    a(f"buffer_store_dwordx2 v[200:201], v202, s[{srd_ws}:{srd_ws+3}], s92 offen")
    a("s_mov_b64 exec, s[94:95]")

def wave_sum_to_sgpr(a, v, sdst):
    for sh in (1, 2, 4, 8):
        a("s_nop 1")
        a(f"v_add_f32_dpp v{v}, v{v}, v{v} row_shr:{sh} row_mask:0xf bank_mask:0xf bound_ctrl:0")
    a("s_nop 1")
    a(f"v_add_f32_dpp v{v}, v{v}, v{v} row_bcast:15 row_mask:0xa bank_mask:0xf")
    a("s_nop 1")
    a(f"v_add_f32_dpp v{v}, v{v}, v{v} row_bcast:31 row_mask:0xc bank_mask:0xf")
    a("s_nop 1")
    a(f"v_readlane_b32 s{sdst}, v{v}, 63")
    a("s_nop 3")


def bf16_round_inplace(a, v, tmp):
    a(f"v_cvt_pk_bf16_f32 v{tmp}, v{v}, v{v}")
    a(f"v_lshlrev_b32 v{v}, 16, v{tmp}")


def layernorm_regs(a, xin, tmp0, packed_out):
    t = tmp0
    a(f"v_add_f32 v{t}, v{xin}, v{xin+1}")
    for i in range(2, 8):
        a(f"v_add_f32 v{t}, v{t}, v{xin+i}")
    wave_sum_to_sgpr(a, t, 20)
    a(f"v_mov_b32 v{t+1}, s20")
    a(f"v_mul_f32 v{t+1}, 0x{F32_1_512:x}, v{t+1}")
    for i in range(8):
        a(f"v_sub_f32 v{t+2+i}, v{xin+i}, v{t+1}")
    a(f"v_mul_f32 v{t}, v{t+2}, v{t+2}")
    for i in range(1, 8):
        a(f"v_fmac_f32 v{t}, v{t+2+i}, v{t+2+i}")
    wave_sum_to_sgpr(a, t, 21)
    a(f"v_mov_b32 v{t}, s21")
    a(f"v_mul_f32 v{t}, 0x{F32_1_512:x}, v{t}")
    bf16_round_inplace(a, t, t+10)
    a(f"v_add_f32 v{t}, 0x{F32_EPS:x}, v{t}")
    bf16_round_inplace(a, t, t+10)
    a(f"v_sqrt_f32 v{t}, v{t}")
    a("s_nop 1")
    bf16_round_inplace(a, t, t+10)
    a(f"v_rcp_f32 v{t}, v{t}")
    a("s_nop 1")
    bf16_round_inplace(a, t+1, t+10)
    for i in range(8):
        a(f"v_sub_f32 v{t+2+i}, v{xin+i}, v{t+1}")
    for i in range(0, 8, 2):
        a(f"v_cvt_pk_bf16_f32 v{t+10}, v{t+2+i}, v{t+3+i}")
        a(f"v_lshlrev_b32 v{t+2+i}, 16, v{t+10}")
        a(f"v_and_b32 v{t+3+i}, 0xffff0000, v{t+10}")
    for i in range(8):
        a(f"v_mul_f32 v{t+2+i}, v{t+2+i}, v{t}")
    for i in range(0, 8, 2):
        a(f"v_cvt_pk_bf16_f32 v{packed_out+i//2}, v{t+2+i}, v{t+3+i}")
        a(f"v_lshlrev_b32 v{xin+i}, 16, v{packed_out+i//2}")
        a(f"v_and_b32 v{xin+i+1}, 0xffff0000, v{packed_out+i//2}")


def gen_ln(a):
    name = "ln_kernel"
    kernel_header(a, name)
    a(f"s_load_dwordx2 s[4:5], s[0:1], {KA_X}")
    a(f"s_load_dwordx2 s[6:7], s[0:1], {KA_WS}")
    a("s_cmp_ge_u32 s2, 769")
    a("s_cbranch_scc1 ln_end")
    a("s_cmp_ge_u32 s2, 513")
    a("s_cbranch_scc1 ln_pref")
    a("s_cmp_eq_u32 s2, 512")
    a("s_cbranch_scc1 ln_params")
    a("v_lshrrev_b32 v1, 6, v0")
    a("s_nop 1")
    a("v_readfirstlane_b32 s3, v1")
    a("s_lshl_b32 s16, s2, 2")
    a("s_nop 2")
    a("s_add_u32 s16, s16, s3")
    a("s_lshl_b32 s16, s16, 10")
    a("v_and_b32 v1, 63, v0")
    a("v_lshlrev_b32 v1, 4, v1")
    a("s_waitcnt lgkmcnt(0)")
    srd(a, 8, 4, L * D * 2)
    srd(a, 12, 6, WS_SIZE)
    a("buffer_load_dwordx4 v[4:7], v1, s[8:11], s16 offen")
    a("s_waitcnt vmcnt(0)")
    for i in range(4):
        a(f"v_lshlrev_b32 v{8+2*i}, 16, v{4+i}")
        a(f"v_and_b32 v{9+2*i}, 0xffff0000, v{4+i}")
    layernorm_regs(a, 8, 16, 4)
    a(f"s_add_u32 s17, s16, 0x{WS_XN:x}")
    a("buffer_store_dwordx4 v[4:7], v1, s[12:15], s17 offen")
    layernorm_regs(a, 8, 16, 32)
    a(f"s_add_u32 s17, s16, 0x{WS_H2:x}")
    a("buffer_store_dwordx4 v[32:35], v1, s[12:15], s17 offen")
    a("s_branch ln_end")

    a.label("ln_params")
    a(f"s_load_dwordx2 s[16:17], s[0:1], {KA_LRE}")
    a(f"s_load_dwordx2 s[18:19], s[0:1], {KA_LIM}")
    a(f"s_load_dwordx2 s[20:21], s[0:1], {KA_LDT}")
    a("s_waitcnt lgkmcnt(0)")
    srd(a, 8, 16, P * 2)
    srd(a, 24, 18, P * 2)
    srd(a, 28, 20, P * 2)
    srd(a, 12, 6, WS_SIZE)
    a(f"s_mov_b32 s22, 0x{WS_PAR:x}")
    for it in range(2):
        a(f"v_add_u32 v1, {256*it}, v0")
        a("v_lshlrev_b32 v2, 1, v1")
        a("buffer_load_ushort v4, v2, s[8:11], 0 offen")
        a("buffer_load_ushort v5, v2, s[24:27], 0 offen")
        a("buffer_load_ushort v6, v2, s[28:31], 0 offen")
        a("s_waitcnt vmcnt(0)")
        a("v_lshlrev_b32 v4, 16, v4")
        a("v_lshlrev_b32 v5, 16, v5")
        a("v_lshlrev_b32 v6, 16, v6")
        a(f"v_mul_f32 v6, 0x{F32_LOG2E:x}, v6")
        a("v_exp_f32 v6, v6")
        a("s_nop 1")
        bf16_round_inplace(a, 6, 20)
        a("v_mul_f32 v7, v6, v4")
        a("v_mul_f32 v8, v6, v5")
        a(f"v_mul_f32 v7, 0x{F32_LOG2E:x}, v7")
        a("v_exp_f32 v7, v7")
        a(f"v_mul_f32 v8, 0x{F32_INV2PI:x}, v8")
        a("v_fract_f32 v8, v8")
        a("v_sin_f32 v9, v8")
        a("v_cos_f32 v10, v8")
        a("s_nop 1")
        a("v_mul_f32 v11, v7, v10")
        a("v_mul_f32 v12, v7, v9")
        a("v_add_f32 v13, -1.0, v11")
        a("v_mul_f32 v14, v4, v4")
        a("v_fmac_f32 v14, v5, v5")
        a("v_rcp_f32 v14, v14")
        a("v_mul_f32 v15, v13, v4")
        a("v_fmac_f32 v15, v12, v5")
        a("v_mul_f32 v16, v12, v4")
        a("v_mul_f32 v17, v13, v5")
        a("v_sub_f32 v16, v16, v17")
        a("v_mul_f32 v15, v15, v14")
        a("v_mul_f32 v16, v16, v14")
        a("v_mov_b32 v17, v11")
        a("v_mov_b32 v18, v12")
        for _ in range(5):
            a("v_mul_f32 v19, v17, v17")
            a("v_mul_f32 v20, v18, v18")
            a("v_sub_f32 v19, v19, v20")
            a("v_mul_f32 v18, v17, v18")
            a("v_add_f32 v18, v18, v18")
            a("v_mov_b32 v17, v19")
        a("v_lshlrev_b32 v2, 2, v1")
        for k, reg in enumerate((11, 12, 15, 16, 17, 18)):
            a(f"v_add_u32 v3, {k*2048}, v2")
            a(f"buffer_store_dword v{reg}, v3, s[12:15], s22 offen")
    a("s_branch ln_end")
    a.label("ln_pref")
    a("s_sub_u32 s22, s2, 513")
    a("s_movk_i32 s23, 80")
    a("s_mov_b32 s24, s22")
    a("s_cmp_lt_u32 s22, 112")
    a("s_cbranch_scc1 ln_pref_go")
    a("s_movk_i32 s23, 96")
    a("s_sub_u32 s24, s22, 112")
    a("s_cmp_lt_u32 s22, 224")
    a("s_cbranch_scc1 ln_pref_go")
    a("s_sub_u32 s24, s22, 224")
    a("s_lshr_b32 s23, s24, 3")
    a("s_lshl_b32 s23, s23, 3")
    a("s_add_u32 s23, s23, 24")
    a("s_and_b32 s24, s24, 7")
    a.label("ln_pref_go")
    a("s_add_u32 s26, s0, s23")
    a("s_addc_u32 s27, s1, 0")
    a("s_load_dwordx2 s[16:17], s[26:27], 0")
    a("s_lshl_b32 s24, s24, 16")
    a("v_lshlrev_b32 v1, 4, v0")
    a("s_waitcnt lgkmcnt(0)")
    srd(a, 8, 16, 112 * 65536)
    for k in range(16):
        a(f"s_add_u32 s25, s24, {k*4096}")
        a(f"buffer_load_dwordx4 v[{4+4*(k%8)}:{7+4*(k%8)}], v1, s[8:11], s25 offen")
        if k == 7:
            a("s_waitcnt vmcnt(0)")
    a("s_waitcnt vmcnt(0)")
    a.label("ln_end")
    a("s_endpgm")
    return name, 40, 32


V_ACC = 16
V_FRAG = 48
V_VOFF = 72
V_RD = 84
V_EPI = 110
S_WBASE = 40
S_SOFF = 32


def emit_lane_ids(a):
    a("v_lshrrev_b32 v1, 6, v0")
    a("s_nop 1")
    a("v_readfirstlane_b32 s3, v1")
    a("v_and_b32 v1, 63, v0")
    a("v_lshrrev_b32 v2, 5, v1")
    a("v_and_b32 v3, 31, v1")
    a("s_nop 2")
    a(f"s_lshl_b32 s{S_WBASE}, s3, 11")


def emit_dma_voff(a, blk, typ, ld):
    for q in range(2):
        vd = V_VOFF + 2 * blk + q
        a("v_lshrrev_b32 v4, 3, v1")
        a(f"v_lshl_add_u32 v4, s3, 4, v4")
        if q:
            a("v_add_u32 v4, 8, v4")
        a("v_lshrrev_b32 v5, 1, v4")
        if typ == "N":
            a("v_and_b32 v5, 7, v5")
        else:
            a("v_and_b32 v5, 1, v5")
            a("v_lshlrev_b32 v5, 2, v5")
        a("v_and_b32 v6, 7, v1")
        if "noswz" in ABL:
            a("v_mov_b32 v5, v6")
        else:
            a("v_xor_b32 v5, v5, v6")
        a("v_lshlrev_b32 v5, 4, v5")
        a(f"s_mov_b32 s44, {ld}")
        a("v_mul_lo_u32 v4, v4, s44")
        a(f"v_add_u32 v{vd}, v4, v5")
        if q:
            a(f"v_subrev_u32 v{vd}, 1024, v{vd}")


def emit_rd_addr(a, base_reg, typ, wsel, hi_copy=None):
    if typ == "N":
        a(f"v_lshl_add_u32 v4, s{wsel}, 5, v3")
        a("v_lshrrev_b32 v5, 1, v4")
        a("v_and_b32 v5, 7, v5")
        a("v_lshlrev_b32 v4, 7, v4")
        for j in range(4):
            a(f"v_add_u32 v6, {2*j}, v2")
            a("v_xor_b32 v6, v6, v5")
            a(f"v_lshl_add_u32 v{base_reg+j}, v6, 4, v4")
        n = 4
    else:
        a("v_and_b32 v4, 15, v1")
        a("v_lshrrev_b32 v4, 2, v4")
        a("v_lshl_add_u32 v5, v2, 3, v4")
        a("v_lshlrev_b32 v5, 7, v5")
        a("v_lshrrev_b32 v6, 1, v4")
        a("v_and_b32 v6, 1, v6")
        a("v_lshlrev_b32 v6, 2, v6")
        a("v_lshrrev_b32 v7, 4, v1")
        a("v_and_b32 v7, 1, v7")
        a("v_lshlrev_b32 v7, 1, v7")
        a(f"v_lshl_add_u32 v7, s{wsel}, 2, v7")
        a("v_and_b32 v8, 3, v1")
        a("v_lshrrev_b32 v9, 1, v8")
        a("v_add_u32 v7, v7, v9")
        a("v_xor_b32 v7, v7, v6")
        a("v_lshl_add_u32 v5, v7, 4, v5")
        a("v_and_b32 v8, 1, v8")
        a(f"v_lshl_add_u32 v{base_reg}, v8, 3, v5")
        n = 1
    if hi_copy is not None:
        for j in range(n):
            a(f"v_add_u32 v{hi_copy[0]+j}, 0x{hi_copy[1]:x}, v{base_reg+j}")


class Operand:
    def __init__(self, blk, typ, rd, rd_hi=None, hi_add=0):
        self.blk, self.typ, self.rd, self.rd_hi, self.hi_add = blk, typ, rd, rd_hi, hi_add

    def emit_read(self, a, dst, slot_base, j):
        off = slot_base + self.blk * 8192
        if self.typ == "N":
            reg = self.rd + j
            offs = [(off, dst, "ds_read_b128 v[%d:%d]" % (dst, dst + 3))]
        else:
            reg = self.rd
            offs = [(off + (16 * j) * 128, dst, "ds_read_b64_tr_b16 v[%d:%d]" % (dst, dst + 1)),
                    (off + (16 * j + 4) * 128, dst + 2, "ds_read_b64_tr_b16 v[%d:%d]" % (dst + 2, dst + 3))]
        for o, _, ins in offs:
            r = reg
            if o > 65535:
                assert self.rd_hi is not None
                r = self.rd_hi + (j if self.typ == "N" else 0)
                o -= self.hi_add
            assert 0 <= o <= 65535
            a(f"{ins}, v{r} offset:{o}")
        return len(offs)


ABL = set()
NSL = 4
HIADD = 65536


def gemm_mainloop(a, stages, nslots, slot_size, pd):
    n = len(stages)

    def issue(s):
        st = stages[s]
        slot = s % nslots
        for ld_ in st["loads"]:
            (srd_, vb, so, inc, lblk) = ld_[:5]
            if "noload" in ABL:
                continue
            a(f"s_add_u32 m0, s{S_WBASE}, {slot*slot_size + lblk*8192}")
            a("s_nop 0")
            a(f"buffer_load_dwordx4 v{V_VOFF+2*vb}, s[{srd_}:{srd_+3}], s{so} offen lds")
            if "nooff" in ABL:
                a(f"s_add_u32 m0, s{S_WBASE}, {slot*slot_size + lblk*8192 + 1024}")
                a("s_nop 0")
                a(f"buffer_load_dwordx4 v{V_VOFF+2*vb+1}, s[{srd_}:{srd_+3}], s{so} offen lds")
            else:
                a(f"buffer_load_dwordx4 v{V_VOFF+2*vb+1}, s[{srd_}:{srd_+3}], s{so} offen offset:1024 lds")
            if inc:
                a(f"s_add_u32 s{so}, s{so}, 0x{inc:x}")
            if len(ld_) > 5:
                send, span = ld_[5]
                a(f"s_cmp_ge_u32 s{so}, s{send}")
                a(f"s_cselect_b32 s44, 0x{span:x}, 0")
                a(f"s_sub_u32 s{so}, s{so}, s44")

    for s in range(min(pd, n)):
        issue(s)
    for s in range(n):
        st = stages[s]
        slot = s % nslots
        outstanding = sum(2 * len(stages[t]["loads"]) for t in range(s + 1, min(s + pd, n)))
        a(f"s_waitcnt vmcnt({outstanding})")
        a("s_barrier")
        if s + pd < n:
            issue(s + pd)
        if st.get("stamp") is not None or ("finestamp" in ABL and s % 4 == 0 and len(stages) == 44):
            stamp(a, 16)
        ops = st["ops"]
        if "nocompute" in ABL:
            continue
        nreads = 0
        for o, op in enumerate(ops):
            nreads += op.emit_read(a, V_FRAG + 4 * o, slot * slot_size, 0)
        for j in range(4):
            cur = V_FRAG + 12 * (j % 2)
            nxt = V_FRAG + 12 * ((j + 1) % 2)
            if j < 3:
                nn = 0
                for o, op in enumerate(ops):
                    nn += op.emit_read(a, nxt + 4 * o, slot * slot_size, j + 1)
                a(f"s_waitcnt lgkmcnt({nn})")
            else:
                a("s_waitcnt lgkmcnt(0)")
            for (acc, ia, ib) in st["mfmas"]:
                A = cur + 4 * ia
                B = cur + 4 * ib
                a(f"v_mfma_f32_32x32x16_bf16 v[{acc}:{acc+15}], v[{A}:{A+3}], v[{B}:{B+3}], v[{acc}:{acc+15}]")


def zero_acc(a, n):
    for i in range(n):
        a(f"v_mov_b32 v{V_ACC+i}, 0")


def gen_c1(a):
    name = "c1_kernel"
    kernel_header(a, name)
    a("s_cmp_ge_u32 s2, 256")
    a("s_cbranch_scc1 c1_end")
    a(f"s_load_dwordx2 s[4:5], s[0:1], {KA_BRE}")
    a(f"s_load_dwordx2 s[6:7], s[0:1], {KA_BIM}")
    a(f"s_load_dwordx2 s[20:21], s[0:1], {KA_WS}")
    emit_lane_ids(a)
    a("s_and_b32 s45, s2, 7")
    a("s_lshr_b32 s46, s2, 3")
    a("s_lshr_b32 s47, s3, 1")
    a("s_and_b32 s48, s3, 1")
    a("s_waitcnt lgkmcnt(0)")
    srd(a, 8, 4, P * D * 2)
    srd(a, 12, 6, P * D * 2)
    srd(a, 16, 20, WS_SIZE)
    a("s_lshl_b32 s49, s45, 6")
    a("s_lshl_b32 s50, s48, 5")
    a("s_add_u32 s49, s49, s50")
    a("v_add_u32 v4, s49, v3")
    a(f"v_lshlrev_b32 v{V_EPI+8}, 2, v4")
    a(f"s_mov_b32 s51, 0x{WS_PAR:x}")
    for k in range(4):
        a(f"v_add_u32 v5, {k*2048}, v{V_EPI+8}")
        a(f"buffer_load_dword v{V_EPI+k}, v5, s[16:19], s51 offen")
    emit_dma_voff(a, 0, "N", 1024)
    emit_dma_voff(a, 1, "N", 1024)
    emit_dma_voff(a, 2, "N", 1024)
    HI = 40960
    emit_rd_addr(a, V_RD + 0, "N", 47, (V_RD + 12, HI))
    emit_rd_addr(a, V_RD + 4, "N", 48, (V_RD + 16, HI))
    a(f"s_lshl_b32 s{S_SOFF}, s46, 16")
    a(f"s_add_u32 s{S_SOFF}, s{S_SOFF}, 0x{WS_XN:x}")
    a(f"s_lshl_b32 s{S_SOFF+1}, s45, 16")
    a(f"s_mov_b32 s{S_SOFF+2}, s{S_SOFF+1}")
    zero_acc(a, 32)
    opA = Operand(0, "N", V_RD + 0, V_RD + 12, HI)
    opBr = Operand(1, "N", V_RD + 4, V_RD + 16, HI)
    opBi = Operand(2, "N", V_RD + 4, V_RD + 16, HI)
    stages = []
    for s in range(8):
        stages.append(dict(loads=[(16, 0, S_SOFF, 128, 0), (8, 1, S_SOFF + 1, 128, 1), (12, 2, S_SOFF + 2, 128, 2)],
                           ops=[opA, opBr, opBi], mfmas=[(V_ACC, 0, 1), (V_ACC + 16, 0, 2)]))
    gemm_mainloop(a, stages, 3, 24576, 2)
    a("s_nop 15")
    a("s_nop 7")
    ar, ai, cr, ci = V_EPI, V_EPI + 1, V_EPI + 2, V_EPI + 3
    t0, t1 = V_EPI + 9, V_EPI + 10
    for i in range(16):
        re, im = V_ACC + i, V_ACC + 16 + i
        a(f"v_mul_f32 v{t0}, v{cr}, v{re}")
        a(f"v_mul_f32 v{t1}, v{cr}, v{im}")
        a(f"v_fmac_f32 v{t1}, v{ci}, v{re}")
        a(f"v_fma_f32 v{re}, -v{ci}, v{im}, v{t0}")
        a(f"v_mov_b32 v{im}, v{t1}")
    a("s_lshl_b32 s52, s46, 6")
    a("s_lshl_b32 s53, s47, 5")
    a("s_add_u32 s52, s52, s53")
    a(f"v_lshl_add_u32 v4, v2, 2, s52")
    a(f"v_lshl_add_u32 v4, v4, 11, v{V_EPI+8}")
    a(f"s_mov_b32 s54, 0x{WS_BURE:x}")
    a(f"s_mov_b32 s55, 0x{WS_BUIM:x}")
    for i in range(16):
        roff = (8 * (i // 4) + i % 4) * 2048
        a(f"v_add_u32 v5, 0x{roff:x}, v4")
        a(f"buffer_store_dword v{V_ACC+i}, v5, s[16:19], s54 offen")
        a(f"buffer_store_dword v{V_ACC+16+i}, v5, s[16:19], s55 offen")
    a2r, a2i, a4r, a4i, a5r, a5i = [V_EPI + 11 + k for k in range(6)]
    Tr, Ti, t2 = V_EPI + 18, V_EPI + 19, V_EPI + 20

    def cmul(dr, di, xr, xi, yr, yi):
        a(f"v_mul_f32 v{t0}, v{xr}, v{yr}")
        a(f"v_mul_f32 v{t1}, v{xr}, v{yi}")
        a(f"v_fma_f32 v{t0}, -v{xi}, v{yi}, v{t0}")
        a(f"v_fmac_f32 v{t1}, v{xi}, v{yr}")
        a(f"v_mov_b32 v{dr}, v{t0}")
        a(f"v_mov_b32 v{di}, v{t1}")
    cmul(a2r, a2i, ar, ai, ar, ai)
    cmul(a4r, a4i, a2r, a2i, a2r, a2i)
    cmul(a5r, a5i, a4r, a4i, ar, ai)
    a(f"v_mov_b32 v{Tr}, v{V_ACC}")
    a(f"v_mov_b32 v{Ti}, v{V_ACC+16}")
    for i in range(1, 16):
        mr, mi = (a5r, a5i) if i % 4 == 0 else (ar, ai)
        a(f"v_fma_f32 v{t0}, v{mr}, v{Tr}, v{V_ACC+i}")
        a(f"v_fma_f32 v{t1}, v{mr}, v{Ti}, v{V_ACC+16+i}")
        a(f"v_fma_f32 v{t0}, -v{mi}, v{Ti}, v{t0}")
        a(f"v_fma_f32 v{Ti}, v{mi}, v{Tr}, v{t1}")
        a(f"v_mov_b32 v{Tr}, v{t0}")
    cmul(t2, t2 + 1, Tr, Ti, a4r, a4i)
    a("v_cmp_eq_u32 vcc, 0, v2")
    a("s_nop 3")
    a(f"v_cndmask_b32 v{Tr}, v{Tr}, v{t2}, vcc")
    a(f"v_cndmask_b32 v{Ti}, v{Ti}, v{t2+1}, vcc")
    a("s_lshl_b32 s52, s46, 1")
    a("s_add_u32 s52, s52, s47")
    a("s_lshl_b32 s52, s52, 1")
    a("v_add_u32 v4, s52, v2")
    a(f"v_lshlrev_b32 v4, 12, v4")
    a(f"v_lshl_add_u32 v4, v{V_EPI+8}, 1, v4")
    a(f"s_mov_b32 s54, 0x{WS_E:x}")
    a(f"buffer_store_dwordx2 v[{Tr}:{Ti}], v4, s[16:19], s54 offen")
    a.label("c1_end")
    a("s_endpgm")
    return name, 136, 64


def gen_mid(a):
    name = "mid_kernel"
    kernel_header(a, name)
    a("s_cmp_ge_u32 s2, 352")
    a("s_cbranch_scc1 mid_end")
    a("s_cmp_ge_u32 s2, 224")
    a("s_cbranch_scc1 mid_scan")
    a(f"s_load_dwordx2 s[4:5], s[0:1], {KA_W1}")
    a(f"s_load_dwordx2 s[6:7], s[0:1], {KA_B1}")
    a(f"s_load_dwordx2 s[20:21], s[0:1], {KA_WS}")
    emit_lane_ids(a)
    a("s_and_b32 s45, s2, 7")
    a("s_lshr_b32 s46, s2, 3")
    a("s_mul_i32 s47, s46, 37")
    a("s_lshr_b32 s47, s47, 8")
    a("s_mul_i32 s48, s47, 7")
    a("s_sub_u32 s48, s46, s48")
    a("s_lshr_b32 s49, s45, 2")
    a("s_lshl_b32 s49, s49, 2")
    a("s_add_u32 s49, s49, s47")
    a("s_and_b32 s50, s45, 3")
    a("s_mul_i32 s50, s50, 7")
    a("s_add_u32 s50, s50, s48")
    a("s_lshr_b32 s47, s3, 1")
    a("s_and_b32 s48, s3, 1")
    a("s_waitcnt lgkmcnt(0)")
    srd(a, 8, 4, L * F * 2)
    srd(a, 12, 6, F * 2)
    srd(a, 16, 20, WS_SIZE)
    a("s_lshl_b32 s51, s50, 6")
    a("s_lshl_b32 s52, s48, 5")
    a("s_add_u32 s51, s51, s52")
    a("v_add_u32 v4, s51, v3")
    a(f"v_lshlrev_b32 v{V_EPI+1}, 1, v4")
    a(f"buffer_load_ushort v{V_EPI}, v{V_EPI+1}, s[12:15], 0 offen")
    emit_dma_voff(a, 0, "T", 1024)
    emit_dma_voff(a, 1, "T", F * 2)
    emit_rd_addr(a, V_RD + 0, "T", 47, (V_RD + 12, HIADD))
    emit_rd_addr(a, V_RD + 1, "T", 48, (V_RD + 13, HIADD))
    a(f"s_lshl_b32 s{S_SOFF}, s49, 7")
    a(f"s_add_u32 s{S_SOFF}, s{S_SOFF}, 0x{WS_H2:x}")
    a(f"s_lshl_b32 s{S_SOFF+1}, s50, 7")
    zero_acc(a, 16)
    opA = Operand(0, "T", V_RD + 0, V_RD + 12, HIADD)
    opB = Operand(1, "T", V_RD + 1, V_RD + 13, HIADD)
    stages = []
    for s in range(L // 64):
        stages.append(dict(loads=[(16, 0, S_SOFF, 64 * 1024, 0), (8, 1, S_SOFF + 1, 64 * F * 2, 1)],
                           ops=[opA, opB], mfmas=[(V_ACC, 0, 1)]))
    gemm_mainloop(a, stages, NSL, 16384, NSL - 1)
    a("s_nop 15")
    a("s_nop 7")
    b1 = V_EPI
    a(f"v_lshlrev_b32 v{b1}, 16, v{b1}")
    t0, t1, t2 = V_EPI + 2, V_EPI + 3, V_EPI + 4
    a("s_lshl_b32 s52, s49, 6")
    a("s_lshl_b32 s53, s47, 5")
    a("s_add_u32 s52, s52, s53")
    a(f"v_lshl_add_u32 v4, v2, 2, s52")
    a(f"s_movk_i32 s53, {F*2}")
    a(f"v_mul_lo_u32 v4, v4, s53")
    a(f"v_add_u32 v4, v4, v{V_EPI+1}")
    a(f"s_mov_b32 s54, 0x{WS_G:x}")
    a("s_mov_b32 s55, 0x3f4c422a")
    a("s_mov_b32 s56, 0x3d372713")
    a("s_mov_b32 s57, 0x4038aa3b")
    for i in range(16):
        r = V_ACC + i
        bf16_round_inplace(a, r, t0)
        a(f"v_add_f32 v{r}, v{r}, v{b1}")
        bf16_round_inplace(a, r, t0)
        a(f"v_mul_f32 v{t0}, v{r}, v{r}")
        a(f"v_mul_f32 v{t0}, v{t0}, v{r}")
        a(f"v_fma_f32 v{t0}, s56, v{t0}, v{r}")
        a(f"v_mul_f32 v{t0}, s55, v{t0}")
        a(f"v_mul_f32 v{t0}, s57, v{t0}")
        a(f"v_exp_f32 v{t0}, v{t0}")
        a("s_nop 0")
        a(f"v_add_f32 v{t0}, 1.0, v{t0}")
        a(f"v_rcp_f32 v{t0}, v{t0}")
        a("s_nop 0")
        a(f"v_fma_f32 v{t0}, -2.0, v{t0}, 1.0")
        a(f"v_add_f32 v{t0}, 1.0, v{t0}")
        a(f"v_mul_f32 v{t0}, 0.5, v{t0}")
        a(f"v_mul_f32 v{t0}, v{t0}, v{r}")
        a(f"v_cvt_pk_bf16_f32 v{t0}, v{t0}, v{t0}")
        roff = (8 * (i // 4) + i % 4) * F * 2
        a(f"v_add_u32 v{t1}, 0x{roff:x}, v4")
        a(f"buffer_store_short v{t0}, v{t1}, s[16:19], s54 offen")
    a("s_branch mid_end")

    a.label("mid_scan")
    if "noscan" in ABL:
        a("s_branch mid_end")
    a(f"s_load_dwordx2 s[20:21], s[0:1], {KA_WS}")
    a("s_sub_u32 s22, s2, 224")
    a("s_lshr_b32 s23, s22, 1")
    a("s_and_b32 s24, s22, 1")
    a("s_lshl_b32 s24, s24, 8")
    a("v_add_u32 v1, s24, v0")
    a("s_waitcnt lgkmcnt(0)")
    srd(a, 16, 20, WS_SIZE)
    a("v_lshlrev_b32 v2, 2, v1")
    a(f"s_mov_b32 s25, 0x{WS_PAR:x}")
    for k, reg in ((0, 4), (1, 5), (4, 6), (5, 7)):
        a(f"v_add_u32 v3, {k*2048}, v2")
        a(f"buffer_load_dword v{reg}, v3, s[16:19], s25 offen")
    a("s_lshl_b32 s26, s23, 16")
    a(f"s_add_u32 s27, s26, 0x{WS_BURE:x}")
    a(f"s_add_u32 s28, s26, 0x{WS_BUIM:x}")
    for j in range(32):
        a(f"v_add_u32 v3, {j*2048}, v2")
        a(f"buffer_load_dword v{16+j}, v3, s[16:19], s27 offen")
        a(f"buffer_load_dword v{48+j}, v3, s[16:19], s28 offen")
    a("v_mov_b32 v8, 0")
    a("v_mov_b32 v9, 0")
    a("v_lshlrev_b32 v3, 3, v1")
    a("v_add_u32 v80, 4096, v3")
    a(f"s_mov_b32 s29, 0x{WS_E:x}")
    a("s_mov_b32 s30, 0")
    a.label("mid_carry")
    a("s_cmp_ge_u32 s30, s23")
    a("s_cbranch_scc1 mid_carry_done")
    for k in range(16):
        a(f"s_add_u32 s31, s29, {k*8192}")
        a(f"buffer_load_dwordx2 v[{84+4*k}:{85+4*k}], v3, s[16:19], s31 offen")
        a(f"buffer_load_dwordx2 v[{86+4*k}:{87+4*k}], v80, s[16:19], s31 offen")
    a("s_waitcnt vmcnt(0)")
    for k in range(16):
        if k:
            a("s_cmp_ge_u32 s30, s23")
            a("s_cbranch_scc1 mid_carry_done")
        a(f"v_add_f32 v10, v{84+4*k}, v{86+4*k}")
        a(f"v_add_f32 v11, v{85+4*k}, v{87+4*k}")
        a("v_fma_f32 v14, v6, v8, v10")
        a("v_fma_f32 v15, v6, v9, v11")
        a("v_fma_f32 v14, -v7, v9, v14")
        a("v_fma_f32 v9, v7, v8, v15")
        a("v_mov_b32 v8, v14")
        a("s_add_u32 s30, s30, 1")
    a(f"s_add_u32 s29, s29, {16*8192}")
    a("s_branch mid_carry")
    a.label("mid_carry_done")
    a("s_waitcnt vmcnt(0)")
    a("s_lshl_b32 s26, s23, 16")
    a(f"s_add_u32 s26, s26, 0x{WS_HS:x}")
    a("v_lshlrev_b32 v3, 1, v1")
    for j in range(32):
        a(f"v_fma_f32 v14, v4, v8, v{16+j}")
        a(f"v_fma_f32 v15, v4, v9, v{48+j}")
        a("v_fma_f32 v14, -v5, v9, v14")
        a("v_fma_f32 v9, v5, v8, v15")
        a("v_mov_b32 v8, v14")
        a("v_cvt_pk_bf16_f32 v10, v8, v8")
        a("v_xor_b32 v11, 0x80000000, v9")
        a("v_cvt_pk_bf16_f32 v11, v11, v11")
        a(f"v_add_u32 v12, {j*2048}, v3")
        a("buffer_store_short v10, v12, s[16:19], s26 offen")
        a("buffer_store_short v11, v12, s[16:19], s26 offen offset:1024")
    a.label("mid_end")
    a("s_endpgm")
    return name, 160, 64


def gen_fin(a):
    name = "fin_kernel"
    kernel_header(a, name)
    a("s_cmp_ge_u32 s2, 256")
    a("s_cbranch_scc1 fin_end")
    a(f"s_load_dwordx2 s[4:5], s[0:1], {KA_W2}")
    a(f"s_load_dwordx2 s[6:7], s[0:1], {KA_CRE}")
    a(f"s_load_dwordx2 s[56:57], s[0:1], {KA_CIM}")
    a(f"s_load_dwordx2 s[58:59], s[0:1], {KA_WS}")
    a(f"s_load_dwordx2 s[60:61], s[0:1], {KA_X}")
    a(f"s_load_dwordx2 s[62:63], s[0:1], {KA_OUT}")
    a(f"s_load_dwordx2 s[64:65], s[0:1], {KA_B2}")
    a(f"s_load_dwordx2 s[66:67], s[0:1], {KA_DSK}")
    emit_lane_ids(a)
    a("s_and_b32 s45, s2, 7")
    a("s_lshr_b32 s46, s2, 3")
    a("s_lshr_b32 s49, s46, 3")
    a("s_lshl_b32 s50, s45, 2")
    a("s_add_u32 s49, s49, s50")
    a("s_and_b32 s50, s46, 7")
    if "sametile" in ABL:
        a("s_mov_b32 s49, 0")
        a("s_mov_b32 s50, 0")
    a("s_lshr_b32 s47, s3, 1")
    a("s_and_b32 s48, s3, 1")
    a("s_waitcnt lgkmcnt(0)")
    srd(a, 8, 4, F * L * 2)
    srd(a, 12, 6, D * P * 2)
    srd(a, 16, 58, WS_SIZE)
    srd(a, 20, 56, D * P * 2)
    srd(a, 24, 60, L * D * 2)
    srd(a, 28, 62, L * D * 4)
    srd(a, 68, 64, L * 2)
    srd(a, 72, 66, D * 2)
    a("s_lshl_b32 s51, s50, 6")
    a("s_lshl_b32 s52, s48, 5")
    a("s_add_u32 s51, s51, s52")
    a("v_add_u32 v4, s51, v3")
    a(f"v_lshlrev_b32 v5, 1, v4")
    a(f"buffer_load_ushort v{V_EPI}, v5, s[72:75], 0 offen")
    a("s_lshl_b32 s52, s49, 6")
    a("s_lshl_b32 s53, s47, 5")
    a("s_add_u32 s52, s52, s53")
    a(f"v_lshl_add_u32 v6, v2, 2, s52")
    a(f"v_lshl_add_u32 v{V_EPI+1}, v6, 10, v5")
    a(f"v_lshlrev_b32 v{V_EPI+2}, 1, v6")
    a(f"s_mov_b32 s54, 0x{WS_XN:x}")
    for i in range(16):
        ro = 8 * (i // 4) + i % 4
        a(f"v_add_u32 v7, {ro*1024}, v{V_EPI+1}")
        a(f"buffer_load_ushort v{V_EPI+4+i}, v7, s[24:27], 0 offen")
        a(f"buffer_load_ushort v{V_EPI+20+i}, v7, s[16:19], s54 offen")
        a(f"buffer_load_ushort v{V_EPI+36+i}, v{V_EPI+2}, s[68:71], 0 offen offset:{ro*2}")
    stamp(a, 16)
    if "compact" in ABL:
        emit_dma_voff(a, 0, "T", 128)
        emit_dma_voff(a, 1, "N", 128)
    else:
        emit_dma_voff(a, 0, "T", L * 2)
        emit_dma_voff(a, 1, "N", F * 2)
    emit_dma_voff(a, 2, "N", 2048)
    emit_dma_voff(a, 3, "N", 1024)
    emit_rd_addr(a, V_RD + 0, "T", 47, (V_RD + 12, HIADD))
    emit_rd_addr(a, V_RD + 1, "N", 48, (V_RD + 13, HIADD))
    emit_rd_addr(a, V_RD + 5, "N", 47, (V_RD + 17, HIADD))
    a(f"s_lshl_b32 s{S_SOFF}, s49, 7")
    a(f"s_mul_i32 s{S_SOFF+1}, s50, {64*F*2}")
    a(f"s_add_u32 s{S_SOFF+1}, s{S_SOFF+1}, 0x{WS_G:x}")
    a(f"s_lshl_b32 s{S_SOFF+2}, s49, 17")
    a(f"s_add_u32 s{S_SOFF+2}, s{S_SOFF+2}, 0x{WS_HS:x}")
    a(f"s_lshl_b32 s{S_SOFF+3}, s50, 16")
    a(f"s_mov_b32 s{S_SOFF+4}, s{S_SOFF+3}")
    if "rot" in ABL:
        a(f"s_add_u32 s76, s{S_SOFF}, 0x{28*64*L*2:x}")
        a(f"s_add_u32 s77, s{S_SOFF+1}, {28*128}")
        a("s_and_b32 s78, s49, 3")
        a("s_lshl_b32 s78, s78, 1")
        a("s_add_u32 s78, s78, s50")
        a("s_mul_i32 s78, s78, 2")
        a(f"s_mul_i32 s79, s78, 0x{64*L*2:x}")
        a(f"s_add_u32 s{S_SOFF}, s{S_SOFF}, s79")
        a(f"s_lshl_b32 s79, s78, 7")
        a(f"s_add_u32 s{S_SOFF+1}, s{S_SOFF+1}, s79")
    zero_acc(a, 32)
    opA1 = Operand(0, "T", V_RD + 0, V_RD + 12, HIADD)
    opB1 = Operand(1, "N", V_RD + 1, V_RD + 13, HIADD)
    opA2 = Operand(0, "N", V_RD + 5, V_RD + 17, HIADD)
    opB2 = Operand(1, "N", V_RD + 1, V_RD + 13, HIADD)
    stages = []
    for s in range(F // 64):
        w1_ = ((76, 28 * 64 * L * 2),) if "rot" in ABL else ()
        w2_ = ((77, 28 * 128),) if "rot" in ABL else ()
        if "compact" in ABL:
            stages.append(dict(loads=[(8, 0, S_SOFF, 8192, 0), (16, 1, S_SOFF + 1, 8192, 1)], ops=[opA1, opB1], mfmas=[(V_ACC, 0, 1)]))
            continue
        stages.append(dict(loads=[(8, 0, S_SOFF, 64 * L * 2, 0) + w1_, (16, 1, S_SOFF + 1, 128, 1) + w2_],
                           ops=[opA1, opB1], mfmas=[(V_ACC, 0, 1)]))
    for s in range(16):
        csrd, cso = (12, S_SOFF + 3) if s < 8 else (20, S_SOFF + 4)
        stages.append(dict(loads=[(16, 2, S_SOFF + 2, 128, 0), (csrd, 3, cso, 128, 1)],
                           ops=[opA2, opB2], mfmas=[(V_ACC + 16, 0, 1)], stamp=(16 if s == 0 else None)))
    stamp(a, 16)
    gemm_mainloop(a, stages, NSL, 16384, NSL - 1)
    a("s_nop 15")
    a("s_nop 7")
    stamp(a, 16)
    dsk = V_EPI
    a(f"v_lshlrev_b32 v{dsk}, 16, v{dsk}")
    t0, t1 = V_EPI + 52, V_EPI + 53
    a(f"v_lshlrev_b32 v{V_EPI+3}, 1, v{V_EPI+1}")
    a(f"s_mov_b32 s55, 0x{F32_LOG2E:x}")
    for i in range(16):
        y, sv = V_ACC + i, V_ACC + 16 + i
        xx, xn, b2 = V_EPI + 4 + i, V_EPI + 20 + i, V_EPI + 36 + i
        a(f"v_lshlrev_b32 v{xx}, 16, v{xx}")
        a(f"v_lshlrev_b32 v{xn}, 16, v{xn}")
        a(f"v_lshlrev_b32 v{b2}, 16, v{b2}")
        bf16_round_inplace(a, y, t0)
        a(f"v_add_f32 v{y}, v{y}, v{b2}")
        bf16_round_inplace(a, y, t0)
        a(f"v_mul_f32 v{t0}, s55, v{y}")
        a(f"v_exp_f32 v{t0}, -v{t0}")
        a("s_nop 0")
        a(f"v_add_f32 v{t0}, 1.0, v{t0}")
        a(f"v_rcp_f32 v{t0}, v{t0}")
        a("s_nop 0")
        a(f"v_mul_f32 v{y}, v{y}, v{t0}")
        bf16_round_inplace(a, y, t0)
        a(f"v_mul_f32 v{xn}, v{xn}, v{dsk}")
        bf16_round_inplace(a, xn, t0)
        a(f"v_fma_f32 v{sv}, 2.0, v{sv}, v{xn}")
        a(f"v_fma_f32 v{sv}, v{sv}, v{y}, v{xx}")
        ro = 8 * (i // 4) + i % 4
        a(f"v_add_u32 v{t1}, {ro*2048}, v{V_EPI+3}")
        a(f"buffer_store_dword v{sv}, v{t1}, s[28:31], 0 offen")
    a("s_waitcnt vmcnt(0)")
    stamp(a, 16)
    a.label("fin_end")
    a("s_endpgm")
    return name, (208 if STAMP["on"] else 168), (100 if STAMP["on"] else 80)

def build(kernels, launches):
    a = Asm()
    head = []
    for ln in launches:
        head.append(f"; @launch kernel={ln[0]} grid=({ln[1]},1,1) block=({ln[2]},1,1) lds={ln[3]}")
    head.append('.amdgcn_target "amdgcn-amd-amdhsa--gfx950"')
    head.append(".text")
    descs = []
    for g in kernels:
        name, vg, sg = g(a)
        descs.append(kernel_desc(name, vg, sg))
    out = "\n".join(head) + "\n" + a.text() + '.section .rodata,"a"\n' + "\n".join(descs) + "\n"
    return out


if __name__ == "__main__":
    which = sys.argv[1] if len(sys.argv) > 1 else "all"
    ABL.update(x for x in which.split(",") if x != "all")
    dst = sys.argv[2] if len(sys.argv) > 2 else f"cdna_kernels/{NAME}.s"
    kernels = [gen_ln, gen_c1, gen_mid, gen_fin]
    if "stamp" in ABL:
        STAMP["on"] = True
        ABL.discard("stamp")
    for x in list(ABL):
        if x.startswith("nsl"):
            NSL = int(x[3:])
            ABL.discard(x)
    launches = [("ln_kernel", 769, 256, 0), ("c1_kernel", 256, 256, 73728), ("mid_kernel", 352, 256, 16384 * NSL), ("fin_kernel", 256, 256, 16384 * NSL)]
    open(dst, "w").write(build(kernels, launches))
    print("wrote", dst)
```

```python
import sys

NAME = "recurrent_scan__ssm_conv_s5__mixer_token_mlp__prompt"

L = 2048
D = 512
P = 512
F = 1792

WS_XN = 0x0000000
WS_H2 = 0x0200000
WS_G = 0x0400000
WS_BURE = 0x0600000
WS_BUIM = 0x0A00000
WS_E = 0x0E00000
WS_HS = 0x1000000
WS_PAR = 0x1400000
WS_SIZE = 268435456

KA_X, KA_LRE, KA_LIM, KA_BRE, KA_BIM, KA_CRE, KA_CIM, KA_LDT, KA_DSK = 0, 8, 16, 24, 32, 40, 48, 56, 64
KA_W1, KA_B1, KA_W2, KA_B2 = 80, 88, 96, 104
KA_OUT, KA_DBG, KA_WS = 112, 120, 128

F32_1_512 = 0x3B000000
F32_EPS = 0x3727C5AC
F32_LOG2E = 0x3FB8AA3B
F32_INV2PI = 0x3E22F983


class Asm:
    def __init__(self):
        self.lines = []

    def __call__(self, s):
        self.lines.append("  " + s)

    def label(self, s):
        self.lines.append(s + ":")

    def raw(self, s):
        self.lines.append(s)

    def text(self):
        return "\n".join(self.lines) + "\n"


def srd(a, sreg, ptr_lo, nbytes):
    a(f"s_mov_b32 s{sreg}, s{ptr_lo}")
    a(f"s_mov_b32 s{sreg+1}, s{ptr_lo+1}")
    a(f"s_mov_b32 s{sreg+2}, 0x{nbytes:x}")
    a(f"s_mov_b32 s{sreg+3}, 0x00020000")


def kernel_header(a, name):
    a.raw(".globl " + name)
    a.raw(".p2align 8")
    a.raw(f".type {name},@function")
    a.label(name)


def kernel_desc(name, vgpr, sgpr):
    acc = (vgpr + 3) // 4 * 4
    return "\n".join([
        ".p2align 6",
        f".amdhsa_kernel {name}",
        f"  .amdhsa_next_free_vgpr {vgpr}",
        f"  .amdhsa_next_free_sgpr {sgpr}",
        f"  .amdhsa_accum_offset {acc}",
        "  .amdhsa_group_segment_fixed_size 0",
        "  .amdhsa_kernarg_size 136",
        "  .amdhsa_user_sgpr_count 2",
        "  .amdhsa_user_sgpr_kernarg_segment_ptr 1",
        "  .amdhsa_system_sgpr_workgroup_id_x 1",
        ".end_amdhsa_kernel",
    ])


WS_DBG = 0x1800000
STAMP = {"on": False, "n": 0}


def stamp(a, srd_ws):
    if not STAMP["on"]:
        return
    idx = STAMP["n"]
    STAMP["n"] += 1
    a("s_memtime s[90:91]")
    a("s_waitcnt lgkmcnt(0)")
    a("v_mov_b32 v200, s90")
    a("v_mov_b32 v201, s91")
    a("s_lshl_b32 s92, s2, 8")
    a(f"s_add_u32 s92, s92, 0x{WS_DBG:x}")
    a(f"s_add_u32 s92, s92, {idx*8}")
    a("v_mov_b32 v202, 0")
    a("v_cmp_eq_u32 vcc, 0, v0")
    a("s_and_saveexec_b64 s[94:95], vcc")
    a(f"buffer_store_dwordx2 v[200:201], v202, s[{srd_ws}:{srd_ws+3}], s92 offen")
    a("s_mov_b64 exec, s[94:95]")

def wave_sum_to_sgpr(a, v, sdst):
    for sh in (1, 2, 4, 8):
        a("s_nop 1")
        a(f"v_add_f32_dpp v{v}, v{v}, v{v} row_shr:{sh} row_mask:0xf bank_mask:0xf bound_ctrl:0")
    a("s_nop 1")
    a(f"v_add_f32_dpp v{v}, v{v}, v{v} row_bcast:15 row_mask:0xa bank_mask:0xf")
    a("s_nop 1")
    a(f"v_add_f32_dpp v{v}, v{v}, v{v} row_bcast:31 row_mask:0xc bank_mask:0xf")
    a("s_nop 1")
    a(f"v_readlane_b32 s{sdst}, v{v}, 63")
    a("s_nop 3")


def bf16_round_inplace(a, v, tmp):
    a(f"v_cvt_pk_bf16_f32 v{tmp}, v{v}, v{v}")
    a(f"v_lshlrev_b32 v{v}, 16, v{tmp}")


def layernorm_regs(a, xin, tmp0, packed_out):
    t = tmp0
    a(f"v_add_f32 v{t}, v{xin}, v{xin+1}")
    for i in range(2, 8):
        a(f"v_add_f32 v{t}, v{t}, v{xin+i}")
    wave_sum_to_sgpr(a, t, 20)
    a(f"v_mov_b32 v{t+1}, s20")
    a(f"v_mul_f32 v{t+1}, 0x{F32_1_512:x}, v{t+1}")
    for i in range(8):
        a(f"v_sub_f32 v{t+2+i}, v{xin+i}, v{t+1}")
    a(f"v_mul_f32 v{t}, v{t+2}, v{t+2}")
    for i in range(1, 8):
        a(f"v_fmac_f32 v{t}, v{t+2+i}, v{t+2+i}")
    wave_sum_to_sgpr(a, t, 21)
    a(f"v_mov_b32 v{t}, s21")
    a(f"v_mul_f32 v{t}, 0x{F32_1_512:x}, v{t}")
    bf16_round_inplace(a, t, t+10)
    a(f"v_add_f32 v{t}, 0x{F32_EPS:x}, v{t}")
    bf16_round_inplace(a, t, t+10)
    a(f"v_sqrt_f32 v{t}, v{t}")
    a("s_nop 1")
    bf16_round_inplace(a, t, t+10)
    a(f"v_rcp_f32 v{t}, v{t}")
    a("s_nop 1")
    bf16_round_inplace(a, t+1, t+10)
    for i in range(8):
        a(f"v_sub_f32 v{t+2+i}, v{xin+i}, v{t+1}")
    for i in range(0, 8, 2):
        a(f"v_cvt_pk_bf16_f32 v{t+10}, v{t+2+i}, v{t+3+i}")
        a(f"v_lshlrev_b32 v{t+2+i}, 16, v{t+10}")
        a(f"v_and_b32 v{t+3+i}, 0xffff0000, v{t+10}")
    for i in range(8):
        a(f"v_mul_f32 v{t+2+i}, v{t+2+i}, v{t}")
    for i in range(0, 8, 2):
        a(f"v_cvt_pk_bf16_f32 v{packed_out+i//2}, v{t+2+i}, v{t+3+i}")
        a(f"v_lshlrev_b32 v{xin+i}, 16, v{packed_out+i//2}")
        a(f"v_and_b32 v{xin+i+1}, 0xffff0000, v{packed_out+i//2}")


def emit_prefetch(a, tag, first, big_slot, small_slot):
    a.label(f"{tag}_pref")
    a(f"s_sub_u32 s22, s2, {first}")
    a(f"s_movk_i32 s23, {big_slot}")
    a("s_mov_b32 s24, s22")
    a("s_cmp_lt_u32 s22, 112")
    a(f"s_cbranch_scc1 {tag}_pref_go")
    a("s_sub_u32 s24, s22, 112")
    a("s_lshr_b32 s23, s24, 3")
    a("s_lshl_b32 s23, s23, 3")
    a(f"s_add_u32 s23, s23, {small_slot}")
    a("s_and_b32 s24, s24, 7")
    a.label(f"{tag}_pref_go")
    a("s_add_u32 s26, s0, s23")
    a("s_addc_u32 s27, s1, 0")
    a("s_load_dwordx2 s[16:17], s[26:27], 0")
    a("s_lshl_b32 s24, s24, 16")
    a("v_lshlrev_b32 v1, 4, v0")
    a("s_waitcnt lgkmcnt(0)")
    srd(a, 8, 16, 112 * 65536)
    for k in range(16):
        a(f"s_add_u32 s25, s24, {k*4096}")
        a(f"buffer_load_dwordx4 v[{4+4*(k%8)}:{7+4*(k%8)}], v1, s[8:11], s25 offen")
        if k == 7:
            a("s_waitcnt vmcnt(0)")
    a("s_waitcnt vmcnt(0)")

def gen_ln(a):
    name = "ln_kernel"
    kernel_header(a, name)
    a(f"s_load_dwordx2 s[4:5], s[0:1], {KA_X}")
    a(f"s_load_dwordx2 s[6:7], s[0:1], {KA_WS}")
    a("s_cmp_ge_u32 s2, 641")
    a("s_cbranch_scc1 ln_end")
    a("s_cmp_ge_u32 s2, 513")
    a("s_cbranch_scc1 ln_pref")
    a("s_cmp_eq_u32 s2, 512")
    a("s_cbranch_scc1 ln_params")
    a("v_lshrrev_b32 v1, 6, v0")
    a("s_nop 1")
    a("v_readfirstlane_b32 s3, v1")
    a("s_lshl_b32 s16, s2, 2")
    a("s_nop 2")
    a("s_add_u32 s16, s16, s3")
    a("s_lshl_b32 s16, s16, 10")
    a("v_and_b32 v1, 63, v0")
    a("v_lshlrev_b32 v1, 4, v1")
    a("s_waitcnt lgkmcnt(0)")
    srd(a, 8, 4, L * D * 2)
    srd(a, 12, 6, WS_SIZE)
    a("buffer_load_dwordx4 v[4:7], v1, s[8:11], s16 offen")
    a("s_waitcnt vmcnt(0)")
    for i in range(4):
        a(f"v_lshlrev_b32 v{8+2*i}, 16, v{4+i}")
        a(f"v_and_b32 v{9+2*i}, 0xffff0000, v{4+i}")
    layernorm_regs(a, 8, 16, 4)
    a(f"s_add_u32 s17, s16, 0x{WS_XN:x}")
    a("buffer_store_dwordx4 v[4:7], v1, s[12:15], s17 offen")
    layernorm_regs(a, 8, 16, 32)
    a(f"s_add_u32 s17, s16, 0x{WS_H2:x}")
    a("buffer_store_dwordx4 v[32:35], v1, s[12:15], s17 offen")
    a("s_branch ln_end")

    a.label("ln_params")
    a(f"s_load_dwordx2 s[16:17], s[0:1], {KA_LRE}")
    a(f"s_load_dwordx2 s[18:19], s[0:1], {KA_LIM}")
    a(f"s_load_dwordx2 s[20:21], s[0:1], {KA_LDT}")
    a("s_waitcnt lgkmcnt(0)")
    srd(a, 8, 16, P * 2)
    srd(a, 24, 18, P * 2)
    srd(a, 28, 20, P * 2)
    srd(a, 12, 6, WS_SIZE)
    a(f"s_mov_b32 s22, 0x{WS_PAR:x}")
    for it in range(2):
        a(f"v_add_u32 v1, {256*it}, v0")
        a("v_lshlrev_b32 v2, 1, v1")
        a("buffer_load_ushort v4, v2, s[8:11], 0 offen")
        a("buffer_load_ushort v5, v2, s[24:27], 0 offen")
        a("buffer_load_ushort v6, v2, s[28:31], 0 offen")
        a("s_waitcnt vmcnt(0)")
        a("v_lshlrev_b32 v4, 16, v4")
        a("v_lshlrev_b32 v5, 16, v5")
        a("v_lshlrev_b32 v6, 16, v6")
        a(f"v_mul_f32 v6, 0x{F32_LOG2E:x}, v6")
        a("v_exp_f32 v6, v6")
        a("s_nop 1")
        bf16_round_inplace(a, 6, 20)
        a("v_mul_f32 v7, v6, v4")
        a("v_mul_f32 v8, v6, v5")
        a(f"v_mul_f32 v7, 0x{F32_LOG2E:x}, v7")
        a("v_exp_f32 v7, v7")
        a(f"v_mul_f32 v8, 0x{F32_INV2PI:x}, v8")
        a("v_fract_f32 v8, v8")
        a("v_sin_f32 v9, v8")
        a("v_cos_f32 v10, v8")
        a("s_nop 1")
        a("v_mul_f32 v11, v7, v10")
        a("v_mul_f32 v12, v7, v9")
        a("v_add_f32 v13, -1.0, v11")
        a("v_mul_f32 v14, v4, v4")
        a("v_fmac_f32 v14, v5, v5")
        a("v_rcp_f32 v14, v14")
        a("v_mul_f32 v15, v13, v4")
        a("v_fmac_f32 v15, v12, v5")
        a("v_mul_f32 v16, v12, v4")
        a("v_mul_f32 v17, v13, v5")
        a("v_sub_f32 v16, v16, v17")
        a("v_mul_f32 v15, v15, v14")
        a("v_mul_f32 v16, v16, v14")
        a("v_mov_b32 v17, v11")
        a("v_mov_b32 v18, v12")
        for _ in range(5):
            a("v_mul_f32 v19, v17, v17")
            a("v_mul_f32 v20, v18, v18")
            a("v_sub_f32 v19, v19, v20")
            a("v_mul_f32 v18, v17, v18")
            a("v_add_f32 v18, v18, v18")
            a("v_mov_b32 v17, v19")
        a("v_lshlrev_b32 v2, 2, v1")
        for k, reg in enumerate((11, 12, 15, 16, 17, 18)):
            a(f"v_add_u32 v3, {k*2048}, v2")
            a(f"buffer_store_dword v{reg}, v3, s[12:15], s22 offen")
    a("s_branch ln_end")
    emit_prefetch(a, "ln", 513, 80, 24)
    a.label("ln_end")
    a("s_endpgm")
    return name, 40, 32


V_ACC = 16
V_FRAG = 48
V_VOFF = 72
V_RD = 84
V_EPI = 110
S_WBASE = 40
S_SOFF = 32


def emit_lane_ids(a):
    a("v_lshrrev_b32 v1, 6, v0")
    a("s_nop 1")
    a("v_readfirstlane_b32 s3, v1")
    a("v_and_b32 v1, 63, v0")
    a("v_lshrrev_b32 v2, 5, v1")
    a("v_and_b32 v3, 31, v1")
    a("s_nop 2")
    a(f"s_lshl_b32 s{S_WBASE}, s3, 11")


def emit_dma_voff(a, blk, typ, ld):
    for q in range(2):
        vd = V_VOFF + 2 * blk + q
        a("v_lshrrev_b32 v4, 3, v1")
        a(f"v_lshl_add_u32 v4, s3, 4, v4")
        if q:
            a("v_add_u32 v4, 8, v4")
        a("v_lshrrev_b32 v5, 1, v4")
        if typ == "N":
            a("v_and_b32 v5, 7, v5")
        else:
            a("v_and_b32 v5, 1, v5")
            a("v_lshlrev_b32 v5, 2, v5")
        a("v_and_b32 v6, 7, v1")
        if "noswz" in ABL:
            a("v_mov_b32 v5, v6")
        else:
            a("v_xor_b32 v5, v5, v6")
        a("v_lshlrev_b32 v5, 4, v5")
        a(f"s_mov_b32 s44, {ld}")
        a("v_mul_lo_u32 v4, v4, s44")
        a(f"v_add_u32 v{vd}, v4, v5")
        if q:
            a(f"v_subrev_u32 v{vd}, 1024, v{vd}")


def emit_rd_addr(a, base_reg, typ, wsel, hi_copy=None):
    if typ == "N":
        a(f"v_lshl_add_u32 v4, s{wsel}, 5, v3")
        a("v_lshrrev_b32 v5, 1, v4")
        a("v_and_b32 v5, 7, v5")
        a("v_lshlrev_b32 v4, 7, v4")
        for j in range(4):
            a(f"v_add_u32 v6, {2*j}, v2")
            a("v_xor_b32 v6, v6, v5")
            a(f"v_lshl_add_u32 v{base_reg+j}, v6, 4, v4")
        n = 4
    else:
        a("v_and_b32 v4, 15, v1")
        a("v_lshrrev_b32 v4, 2, v4")
        a("v_lshl_add_u32 v5, v2, 3, v4")
        a("v_lshlrev_b32 v5, 7, v5")
        a("v_lshrrev_b32 v6, 1, v4")
        a("v_and_b32 v6, 1, v6")
        a("v_lshlrev_b32 v6, 2, v6")
        a("v_lshrrev_b32 v7, 4, v1")
        a("v_and_b32 v7, 1, v7")
        a("v_lshlrev_b32 v7, 1, v7")
        a(f"v_lshl_add_u32 v7, s{wsel}, 2, v7")
        a("v_and_b32 v8, 3, v1")
        a("v_lshrrev_b32 v9, 1, v8")
        a("v_add_u32 v7, v7, v9")
        a("v_xor_b32 v7, v7, v6")
        a("v_lshl_add_u32 v5, v7, 4, v5")
        a("v_and_b32 v8, 1, v8")
        a(f"v_lshl_add_u32 v{base_reg}, v8, 3, v5")
        n = 1
    if hi_copy is not None:
        for j in range(n):
            a(f"v_add_u32 v{hi_copy[0]+j}, 0x{hi_copy[1]:x}, v{base_reg+j}")


class Operand:
    def __init__(self, blk, typ, rd, rd_hi=None, hi_add=0):
        self.blk, self.typ, self.rd, self.rd_hi, self.hi_add = blk, typ, rd, rd_hi, hi_add

    def emit_read(self, a, dst, slot_base, j):
        off = slot_base + self.blk * 8192
        if self.typ == "N":
            reg = self.rd + j
            offs = [(off, dst, "ds_read_b128 v[%d:%d]" % (dst, dst + 3))]
        else:
            reg = self.rd
            offs = [(off + (16 * j) * 128, dst, "ds_read_b64_tr_b16 v[%d:%d]" % (dst, dst + 1)),
                    (off + (16 * j + 4) * 128, dst + 2, "ds_read_b64_tr_b16 v[%d:%d]" % (dst + 2, dst + 3))]
        for o, _, ins in offs:
            r = reg
            if o > 65535:
                assert self.rd_hi is not None
                r = self.rd_hi + (j if self.typ == "N" else 0)
                o -= self.hi_add
            assert 0 <= o <= 65535
            a(f"{ins}, v{r} offset:{o}")
        return len(offs)


ABL = set()
NSL = 4
HIADD = 65536


def gemm_mainloop(a, stages, nslots, slot_size, pd):
    n = len(stages)

    def issue(s):
        st = stages[s]
        slot = s % nslots
        for ld_ in st["loads"]:
            (srd_, vb, so, inc, lblk) = ld_[:5]
            if "noload" in ABL:
                continue
            a(f"s_add_u32 m0, s{S_WBASE}, {slot*slot_size + lblk*8192}")
            a("s_nop 0")
            a(f"buffer_load_dwordx4 v{V_VOFF+2*vb}, s[{srd_}:{srd_+3}], s{so} offen lds")
            if "nooff" in ABL:
                a(f"s_add_u32 m0, s{S_WBASE}, {slot*slot_size + lblk*8192 + 1024}")
                a("s_nop 0")
                a(f"buffer_load_dwordx4 v{V_VOFF+2*vb+1}, s[{srd_}:{srd_+3}], s{so} offen lds")
            else:
                a(f"buffer_load_dwordx4 v{V_VOFF+2*vb+1}, s[{srd_}:{srd_+3}], s{so} offen offset:1024 lds")
            if inc:
                a(f"s_add_u32 s{so}, s{so}, 0x{inc:x}")
            if len(ld_) > 5:
                send, span = ld_[5]
                a(f"s_cmp_ge_u32 s{so}, s{send}")
                a(f"s_cselect_b32 s44, 0x{span:x}, 0")
                a(f"s_sub_u32 s{so}, s{so}, s44")

    for s in range(min(pd, n)):
        issue(s)
    for s in range(n):
        st = stages[s]
        slot = s % nslots
        outstanding = sum(2 * len(stages[t]["loads"]) for t in range(s + 1, min(s + pd, n)))
        a(f"s_waitcnt vmcnt({outstanding})")
        a("s_barrier")
        if s + pd < n:
            issue(s + pd)
        if st.get("stamp") is not None or ("finestamp" in ABL and s % 4 == 0 and len(stages) == 44):
            stamp(a, 16)
        ops = st["ops"]
        if "nocompute" in ABL:
            continue
        nreads = 0
        for o, op in enumerate(ops):
            nreads += op.emit_read(a, V_FRAG + 4 * o, slot * slot_size, 0)
        for j in range(4):
            cur = V_FRAG + 12 * (j % 2)
            nxt = V_FRAG + 12 * ((j + 1) % 2)
            if j < 3:
                nn = 0
                for o, op in enumerate(ops):
                    nn += op.emit_read(a, nxt + 4 * o, slot * slot_size, j + 1)
                a(f"s_waitcnt lgkmcnt({nn})")
            else:
                a("s_waitcnt lgkmcnt(0)")
            for (acc, ia, ib) in st["mfmas"]:
                A = cur + 4 * ia
                B = cur + 4 * ib
                a(f"v_mfma_f32_32x32x16_bf16 v[{acc}:{acc+15}], v[{A}:{A+3}], v[{B}:{B+3}], v[{acc}:{acc+15}]")


def zero_acc(a, n):
    for i in range(n):
        a(f"v_mov_b32 v{V_ACC+i}, 0")


def gen_c1(a):
    name = "c1_kernel"
    kernel_header(a, name)
    a("s_cmp_ge_u32 s2, 384")
    a("s_cbranch_scc1 c1_end")
    a("s_cmp_ge_u32 s2, 256")
    a("s_cbranch_scc1 c1_pref")
    a(f"s_load_dwordx2 s[4:5], s[0:1], {KA_BRE}")
    a(f"s_load_dwordx2 s[6:7], s[0:1], {KA_BIM}")
    a(f"s_load_dwordx2 s[20:21], s[0:1], {KA_WS}")
    emit_lane_ids(a)
    a("s_and_b32 s45, s2, 7")
    a("s_lshr_b32 s46, s2, 3")
    a("s_lshr_b32 s47, s3, 1")
    a("s_and_b32 s48, s3, 1")
    a("s_waitcnt lgkmcnt(0)")
    srd(a, 8, 4, P * D * 2)
    srd(a, 12, 6, P * D * 2)
    srd(a, 16, 20, WS_SIZE)
    a("s_lshl_b32 s49, s45, 6")
    a("s_lshl_b32 s50, s48, 5")
    a("s_add_u32 s49, s49, s50")
    a("v_add_u32 v4, s49, v3")
    a(f"v_lshlrev_b32 v{V_EPI+8}, 2, v4")
    a(f"s_mov_b32 s51, 0x{WS_PAR:x}")
    for k in range(4):
        a(f"v_add_u32 v5, {k*2048}, v{V_EPI+8}")
        a(f"buffer_load_dword v{V_EPI+k}, v5, s[16:19], s51 offen")
    emit_dma_voff(a, 0, "N", 1024)
    emit_dma_voff(a, 1, "N", 1024)
    emit_dma_voff(a, 2, "N", 1024)
    HI = 40960
    emit_rd_addr(a, V_RD + 0, "N", 47, (V_RD + 12, HI))
    emit_rd_addr(a, V_RD + 4, "N", 48, (V_RD + 16, HI))
    a(f"s_lshl_b32 s{S_SOFF}, s46, 16")
    a(f"s_add_u32 s{S_SOFF}, s{S_SOFF}, 0x{WS_XN:x}")
    a(f"s_lshl_b32 s{S_SOFF+1}, s45, 16")
    a(f"s_mov_b32 s{S_SOFF+2}, s{S_SOFF+1}")
    zero_acc(a, 32)
    opA = Operand(0, "N", V_RD + 0, V_RD + 12, HI)
    opBr = Operand(1, "N", V_RD + 4, V_RD + 16, HI)
    opBi = Operand(2, "N", V_RD + 4, V_RD + 16, HI)
    stages = []
    for s in range(8):
        stages.append(dict(loads=[(16, 0, S_SOFF, 128, 0), (8, 1, S_SOFF + 1, 128, 1), (12, 2, S_SOFF + 2, 128, 2)],
                           ops=[opA, opBr, opBi], mfmas=[(V_ACC, 0, 1), (V_ACC + 16, 0, 2)]))
    gemm_mainloop(a, stages, 3, 24576, 2)
    a("s_nop 15")
    a("s_nop 7")
    ar, ai, cr, ci = V_EPI, V_EPI + 1, V_EPI + 2, V_EPI + 3
    t0, t1 = V_EPI + 9, V_EPI + 10
    for i in range(16):
        re, im = V_ACC + i, V_ACC + 16 + i
        a(f"v_mul_f32 v{t0}, v{cr}, v{re}")
        a(f"v_mul_f32 v{t1}, v{cr}, v{im}")
        a(f"v_fmac_f32 v{t1}, v{ci}, v{re}")
        a(f"v_fma_f32 v{re}, -v{ci}, v{im}, v{t0}")
        a(f"v_mov_b32 v{im}, v{t1}")
    a("s_lshl_b32 s52, s46, 6")
    a("s_lshl_b32 s53, s47, 5")
    a("s_add_u32 s52, s52, s53")
    a(f"v_lshl_add_u32 v4, v2, 2, s52")
    a(f"v_lshl_add_u32 v4, v4, 11, v{V_EPI+8}")
    a(f"s_mov_b32 s54, 0x{WS_BURE:x}")
    a(f"s_mov_b32 s55, 0x{WS_BUIM:x}")
    for i in range(16):
        roff = (8 * (i // 4) + i % 4) * 2048
        a(f"v_add_u32 v5, 0x{roff:x}, v4")
        a(f"buffer_store_dword v{V_ACC+i}, v5, s[16:19], s54 offen")
        a(f"buffer_store_dword v{V_ACC+16+i}, v5, s[16:19], s55 offen")
    a2r, a2i, a4r, a4i, a5r, a5i = [V_EPI + 11 + k for k in range(6)]
    Tr, Ti, t2 = V_EPI + 18, V_EPI + 19, V_EPI + 20

    def cmul(dr, di, xr, xi, yr, yi):
        a(f"v_mul_f32 v{t0}, v{xr}, v{yr}")
        a(f"v_mul_f32 v{t1}, v{xr}, v{yi}")
        a(f"v_fma_f32 v{t0}, -v{xi}, v{yi}, v{t0}")
        a(f"v_fmac_f32 v{t1}, v{xi}, v{yr}")
        a(f"v_mov_b32 v{dr}, v{t0}")
        a(f"v_mov_b32 v{di}, v{t1}")
    cmul(a2r, a2i, ar, ai, ar, ai)
    cmul(a4r, a4i, a2r, a2i, a2r, a2i)
    cmul(a5r, a5i, a4r, a4i, ar, ai)
    a(f"v_mov_b32 v{Tr}, v{V_ACC}")
    a(f"v_mov_b32 v{Ti}, v{V_ACC+16}")
    for i in range(1, 16):
        mr, mi = (a5r, a5i) if i % 4 == 0 else (ar, ai)
        a(f"v_fma_f32 v{t0}, v{mr}, v{Tr}, v{V_ACC+i}")
        a(f"v_fma_f32 v{t1}, v{mr}, v{Ti}, v{V_ACC+16+i}")
        a(f"v_fma_f32 v{t0}, -v{mi}, v{Ti}, v{t0}")
        a(f"v_fma_f32 v{Ti}, v{mi}, v{Tr}, v{t1}")
        a(f"v_mov_b32 v{Tr}, v{t0}")
    cmul(t2, t2 + 1, Tr, Ti, a4r, a4i)
    a("v_cmp_eq_u32 vcc, 0, v2")
    a("s_nop 3")
    a(f"v_cndmask_b32 v{Tr}, v{Tr}, v{t2}, vcc")
    a(f"v_cndmask_b32 v{Ti}, v{Ti}, v{t2+1}, vcc")
    a("s_lshl_b32 s52, s46, 1")
    a("s_add_u32 s52, s52, s47")
    a("s_lshl_b32 s52, s52, 1")
    a("v_add_u32 v4, s52, v2")
    a(f"v_lshlrev_b32 v4, 12, v4")
    a(f"v_lshl_add_u32 v4, v{V_EPI+8}, 1, v4")
    a(f"s_mov_b32 s54, 0x{WS_E:x}")
    a(f"buffer_store_dwordx2 v[{Tr}:{Ti}], v4, s[16:19], s54 offen")
    a("s_branch c1_end")
    emit_prefetch(a, "c1", 256, 96, 40)
    a.label("c1_end")
    a("s_endpgm")
    return name, 136, 64


def gen_mid(a):
    name = "mid_kernel"
    kernel_header(a, name)
    a("s_cmp_ge_u32 s2, 352")
    a("s_cbranch_scc1 mid_end")
    a("s_cmp_lt_u32 s2, 128")
    a("s_cbranch_scc1 mid_scan")
    a("s_sub_u32 s2, s2, 128")
    a(f"s_load_dwordx2 s[4:5], s[0:1], {KA_W1}")
    a(f"s_load_dwordx2 s[6:7], s[0:1], {KA_B1}")
    a(f"s_load_dwordx2 s[20:21], s[0:1], {KA_WS}")
    emit_lane_ids(a)
    a("s_and_b32 s45, s2, 7")
    a("s_lshr_b32 s46, s2, 3")
    a("s_mul_i32 s47, s46, 37")
    a("s_lshr_b32 s47, s47, 8")
    a("s_mul_i32 s48, s47, 7")
    a("s_sub_u32 s48, s46, s48")
    a("s_lshr_b32 s49, s45, 2")
    a("s_lshl_b32 s49, s49, 2")
    a("s_add_u32 s49, s49, s47")
    a("s_and_b32 s50, s45, 3")
    a("s_mul_i32 s50, s50, 7")
    a("s_add_u32 s50, s50, s48")
    a("s_lshr_b32 s47, s3, 1")
    a("s_and_b32 s48, s3, 1")
    a("s_waitcnt lgkmcnt(0)")
    srd(a, 8, 4, L * F * 2)
    srd(a, 12, 6, F * 2)
    srd(a, 16, 20, WS_SIZE)
    a("s_lshl_b32 s51, s50, 6")
    a("s_lshl_b32 s52, s48, 5")
    a("s_add_u32 s51, s51, s52")
    a("v_add_u32 v4, s51, v3")
    a(f"v_lshlrev_b32 v{V_EPI+1}, 1, v4")
    a(f"buffer_load_ushort v{V_EPI}, v{V_EPI+1}, s[12:15], 0 offen")
    emit_dma_voff(a, 0, "T", 1024)
    emit_dma_voff(a, 1, "T", F * 2)
    emit_rd_addr(a, V_RD + 0, "T", 47, (V_RD + 12, HIADD))
    emit_rd_addr(a, V_RD + 1, "T", 48, (V_RD + 13, HIADD))
    a(f"s_lshl_b32 s{S_SOFF}, s49, 7")
    a(f"s_add_u32 s{S_SOFF}, s{S_SOFF}, 0x{WS_H2:x}")
    a(f"s_lshl_b32 s{S_SOFF+1}, s50, 7")
    zero_acc(a, 16)
    opA = Operand(0, "T", V_RD + 0, V_RD + 12, HIADD)
    opB = Operand(1, "T", V_RD + 1, V_RD + 13, HIADD)
    stages = []
    for s in range(L // 64):
        stages.append(dict(loads=[(16, 0, S_SOFF, 64 * 1024, 0), (8, 1, S_SOFF + 1, 64 * F * 2, 1)],
                           ops=[opA, opB], mfmas=[(V_ACC, 0, 1)]))
    gemm_mainloop(a, stages, NSL, 16384, NSL - 1)
    a("s_nop 15")
    a("s_nop 7")
    b1 = V_EPI
    a(f"v_lshlrev_b32 v{b1}, 16, v{b1}")
    t0, t1, t2 = V_EPI + 2, V_EPI + 3, V_EPI + 4
    a("s_lshl_b32 s52, s49, 6")
    a("s_lshl_b32 s53, s47, 5")
    a("s_add_u32 s52, s52, s53")
    a(f"v_lshl_add_u32 v4, v2, 2, s52")
    a(f"s_movk_i32 s53, {F*2}")
    a(f"v_mul_lo_u32 v4, v4, s53")
    a(f"v_add_u32 v4, v4, v{V_EPI+1}")
    a(f"s_mov_b32 s54, 0x{WS_G:x}")
    a("s_mov_b32 s55, 0x3f4c422a")
    a("s_mov_b32 s56, 0x3d372713")
    a("s_mov_b32 s57, 0x4038aa3b")
    for i in range(16):
        r = V_ACC + i
        bf16_round_inplace(a, r, t0)
        a(f"v_add_f32 v{r}, v{r}, v{b1}")
        bf16_round_inplace(a, r, t0)
        a(f"v_mul_f32 v{t0}, v{r}, v{r}")
        a(f"v_mul_f32 v{t0}, v{t0}, v{r}")
        a(f"v_fma_f32 v{t0}, s56, v{t0}, v{r}")
        a(f"v_mul_f32 v{t0}, s55, v{t0}")
        a(f"v_mul_f32 v{t0}, s57, v{t0}")
        a(f"v_exp_f32 v{t0}, v{t0}")
        a("s_nop 0")
        a(f"v_add_f32 v{t0}, 1.0, v{t0}")
        a(f"v_rcp_f32 v{t0}, v{t0}")
        a("s_nop 0")
        a(f"v_fma_f32 v{t0}, -2.0, v{t0}, 1.0")
        a(f"v_add_f32 v{t0}, 1.0, v{t0}")
        a(f"v_mul_f32 v{t0}, 0.5, v{t0}")
        a(f"v_mul_f32 v{t0}, v{t0}, v{r}")
        a(f"v_cvt_pk_bf16_f32 v{t0}, v{t0}, v{t0}")
        roff = (8 * (i // 4) + i % 4) * F * 2
        a(f"v_add_u32 v{t1}, 0x{roff:x}, v4")
        a(f"buffer_store_short v{t0}, v{t1}, s[16:19], s54 offen")
    a("s_branch mid_end")

    a.label("mid_scan")
    if "noscan" in ABL:
        a("s_branch mid_end")
    a(f"s_load_dwordx2 s[20:21], s[0:1], {KA_WS}")
    a("s_mov_b32 s22, s2")
    a("s_lshr_b32 s23, s22, 1")
    a("s_and_b32 s24, s22, 1")
    a("s_lshl_b32 s24, s24, 8")
    a("v_add_u32 v1, s24, v0")
    a("s_waitcnt lgkmcnt(0)")
    srd(a, 16, 20, WS_SIZE)
    a("v_lshlrev_b32 v2, 2, v1")
    a(f"s_mov_b32 s25, 0x{WS_PAR:x}")
    for k, reg in ((0, 4), (1, 5), (4, 6), (5, 7)):
        a(f"v_add_u32 v3, {k*2048}, v2")
        a(f"buffer_load_dword v{reg}, v3, s[16:19], s25 offen")
    a("s_lshl_b32 s26, s23, 16")
    a(f"s_add_u32 s27, s26, 0x{WS_BURE:x}")
    a(f"s_add_u32 s28, s26, 0x{WS_BUIM:x}")
    for j in range(32):
        a(f"v_add_u32 v3, {j*2048}, v2")
        a(f"buffer_load_dword v{16+j}, v3, s[16:19], s27 offen")
        a(f"buffer_load_dword v{48+j}, v3, s[16:19], s28 offen")
    a("v_mov_b32 v8, 0")
    a("v_mov_b32 v9, 0")
    a("v_lshlrev_b32 v3, 3, v1")
    a("v_add_u32 v80, 4096, v3")
    a(f"s_mov_b32 s29, 0x{WS_E:x}")
    a("s_mov_b32 s30, 0")
    a.label("mid_carry")
    a("s_cmp_ge_u32 s30, s23")
    a("s_cbranch_scc1 mid_carry_done")
    for k in range(16):
        a(f"s_add_u32 s31, s29, {k*8192}")
        a(f"buffer_load_dwordx2 v[{84+4*k}:{85+4*k}], v3, s[16:19], s31 offen")
        a(f"buffer_load_dwordx2 v[{86+4*k}:{87+4*k}], v80, s[16:19], s31 offen")
    a("s_waitcnt vmcnt(0)")
    for k in range(16):
        if k:
            a("s_cmp_ge_u32 s30, s23")
            a("s_cbranch_scc1 mid_carry_done")
        a(f"v_add_f32 v10, v{84+4*k}, v{86+4*k}")
        a(f"v_add_f32 v11, v{85+4*k}, v{87+4*k}")
        a("v_fma_f32 v14, v6, v8, v10")
        a("v_fma_f32 v15, v6, v9, v11")
        a("v_fma_f32 v14, -v7, v9, v14")
        a("v_fma_f32 v9, v7, v8, v15")
        a("v_mov_b32 v8, v14")
        a("s_add_u32 s30, s30, 1")
    a(f"s_add_u32 s29, s29, {16*8192}")
    a("s_branch mid_carry")
    a.label("mid_carry_done")
    a("s_waitcnt vmcnt(0)")
    a("s_lshl_b32 s26, s23, 16")
    a(f"s_add_u32 s26, s26, 0x{WS_HS:x}")
    a("v_lshlrev_b32 v3, 1, v1")
    for j in range(32):
        a(f"v_fma_f32 v14, v4, v8, v{16+j}")
        a(f"v_fma_f32 v15, v4, v9, v{48+j}")
        a("v_fma_f32 v14, -v5, v9, v14")
        a("v_fma_f32 v9, v5, v8, v15")
        a("v_mov_b32 v8, v14")
        a("v_cvt_pk_bf16_f32 v10, v8, v8")
        a("v_xor_b32 v11, 0x80000000, v9")
        a("v_cvt_pk_bf16_f32 v11, v11, v11")
        a(f"v_add_u32 v12, {j*2048}, v3")
        a("buffer_store_short v10, v12, s[16:19], s26 offen")
        a("buffer_store_short v11, v12, s[16:19], s26 offen offset:1024")
    a.label("mid_end")
    a("s_endpgm")
    return name, 160, 64


def gen_fin(a):
    name = "fin_kernel"
    kernel_header(a, name)
    a("s_cmp_ge_u32 s2, 256")
    a("s_cbranch_scc1 fin_end")
    a(f"s_load_dwordx2 s[4:5], s[0:1], {KA_W2}")
    a(f"s_load_dwordx2 s[6:7], s[0:1], {KA_CRE}")
    a(f"s_load_dwordx2 s[56:57], s[0:1], {KA_CIM}")
    a(f"s_load_dwordx2 s[58:59], s[0:1], {KA_WS}")
    a(f"s_load_dwordx2 s[60:61], s[0:1], {KA_X}")
    a(f"s_load_dwordx2 s[62:63], s[0:1], {KA_OUT}")
    a(f"s_load_dwordx2 s[64:65], s[0:1], {KA_B2}")
    a(f"s_load_dwordx2 s[66:67], s[0:1], {KA_DSK}")
    emit_lane_ids(a)
    a("s_and_b32 s45, s2, 7")
    a("s_lshr_b32 s46, s2, 3")
    a("s_lshr_b32 s49, s46, 3")
    a("s_lshl_b32 s50, s45, 2")
    a("s_add_u32 s49, s49, s50")
    a("s_and_b32 s50, s46, 7")
    if "sametile" in ABL:
        a("s_mov_b32 s49, 0")
        a("s_mov_b32 s50, 0")
    a("s_lshr_b32 s47, s3, 1")
    a("s_and_b32 s48, s3, 1")
    a("s_waitcnt lgkmcnt(0)")
    srd(a, 8, 4, F * L * 2)
    srd(a, 12, 6, D * P * 2)
    srd(a, 16, 58, WS_SIZE)
    srd(a, 20, 56, D * P * 2)
    srd(a, 24, 60, L * D * 2)
    srd(a, 28, 62, L * D * 4)
    srd(a, 68, 64, L * 2)
    srd(a, 72, 66, D * 2)
    a("s_lshl_b32 s51, s50, 6")
    a("s_lshl_b32 s52, s48, 5")
    a("s_add_u32 s51, s51, s52")
    a("v_add_u32 v4, s51, v3")
    a(f"v_lshlrev_b32 v5, 1, v4")
    a(f"buffer_load_ushort v{V_EPI}, v5, s[72:75], 0 offen")
    a("s_lshl_b32 s52, s49, 6")
    a("s_lshl_b32 s53, s47, 5")
    a("s_add_u32 s52, s52, s53")
    a(f"v_lshl_add_u32 v6, v2, 2, s52")
    a(f"v_lshl_add_u32 v{V_EPI+1}, v6, 10, v5")
    a(f"v_lshlrev_b32 v{V_EPI+2}, 1, v6")
    a(f"s_mov_b32 s54, 0x{WS_XN:x}")
    for i in range(16):
        ro = 8 * (i // 4) + i % 4
        a(f"v_add_u32 v7, {ro*1024}, v{V_EPI+1}")
        a(f"buffer_load_ushort v{V_EPI+4+i}, v7, s[24:27], 0 offen")
        a(f"buffer_load_ushort v{V_EPI+20+i}, v7, s[16:19], s54 offen")
        a(f"buffer_load_ushort v{V_EPI+36+i}, v{V_EPI+2}, s[68:71], 0 offen offset:{ro*2}")
    stamp(a, 16)
    if "compact" in ABL:
        emit_dma_voff(a, 0, "T", 128)
        emit_dma_voff(a, 1, "N", 128)
    else:
        emit_dma_voff(a, 0, "T", L * 2)
        emit_dma_voff(a, 1, "N", F * 2)
    emit_dma_voff(a, 2, "N", 2048)
    emit_dma_voff(a, 3, "N", 1024)
    emit_rd_addr(a, V_RD + 0, "T", 47, (V_RD + 12, HIADD))
    emit_rd_addr(a, V_RD + 1, "N", 48, (V_RD + 13, HIADD))
    emit_rd_addr(a, V_RD + 5, "N", 47, (V_RD + 17, HIADD))
    a(f"s_lshl_b32 s{S_SOFF}, s49, 7")
    a(f"s_mul_i32 s{S_SOFF+1}, s50, {64*F*2}")
    a(f"s_add_u32 s{S_SOFF+1}, s{S_SOFF+1}, 0x{WS_G:x}")
    a(f"s_lshl_b32 s{S_SOFF+2}, s49, 17")
    a(f"s_add_u32 s{S_SOFF+2}, s{S_SOFF+2}, 0x{WS_HS:x}")
    a(f"s_lshl_b32 s{S_SOFF+3}, s50, 16")
    a(f"s_mov_b32 s{S_SOFF+4}, s{S_SOFF+3}")
    if "rot" in ABL:
        a(f"s_add_u32 s76, s{S_SOFF}, 0x{28*64*L*2:x}")
        a(f"s_add_u32 s77, s{S_SOFF+1}, {28*128}")
        a("s_and_b32 s78, s49, 3")
        a("s_lshl_b32 s78, s78, 1")
        a("s_add_u32 s78, s78, s50")
        a("s_mul_i32 s78, s78, 2")
        a(f"s_mul_i32 s79, s78, 0x{64*L*2:x}")
        a(f"s_add_u32 s{S_SOFF}, s{S_SOFF}, s79")
        a(f"s_lshl_b32 s79, s78, 7")
        a(f"s_add_u32 s{S_SOFF+1}, s{S_SOFF+1}, s79")
    zero_acc(a, 32)
    opA1 = Operand(0, "T", V_RD + 0, V_RD + 12, HIADD)
    opB1 = Operand(1, "N", V_RD + 1, V_RD + 13, HIADD)
    opA2 = Operand(0, "N", V_RD + 5, V_RD + 17, HIADD)
    opB2 = Operand(1, "N", V_RD + 1, V_RD + 13, HIADD)
    stages = []
    for s in range(F // 64):
        w1_ = ((76, 28 * 64 * L * 2),) if "rot" in ABL else ()
        w2_ = ((77, 28 * 128),) if "rot" in ABL else ()
        if "compact" in ABL:
            stages.append(dict(loads=[(8, 0, S_SOFF, 8192, 0), (16, 1, S_SOFF + 1, 8192, 1)], ops=[opA1, opB1], mfmas=[(V_ACC, 0, 1)]))
            continue
        stages.append(dict(loads=[(8, 0, S_SOFF, 64 * L * 2, 0) + w1_, (16, 1, S_SOFF + 1, 128, 1) + w2_],
                           ops=[opA1, opB1], mfmas=[(V_ACC, 0, 1)]))
    for s in range(16):
        csrd, cso = (12, S_SOFF + 3) if s < 8 else (20, S_SOFF + 4)
        stages.append(dict(loads=[(16, 2, S_SOFF + 2, 128, 0), (csrd, 3, cso, 128, 1)],
                           ops=[opA2, opB2], mfmas=[(V_ACC + 16, 0, 1)], stamp=(16 if s == 0 else None)))
    stamp(a, 16)
    gemm_mainloop(a, stages, NSL, 16384, NSL - 1)
    a("s_nop 15")
    a("s_nop 7")
    stamp(a, 16)
    dsk = V_EPI
    a(f"v_lshlrev_b32 v{dsk}, 16, v{dsk}")
    t0, t1 = V_EPI + 52, V_EPI + 53
    a(f"v_lshlrev_b32 v{V_EPI+3}, 1, v{V_EPI+1}")
    a(f"s_mov_b32 s55, 0x{F32_LOG2E:x}")
    for i in range(16):
        y, sv = V_ACC + i, V_ACC + 16 + i
        xx, xn, b2 = V_EPI + 4 + i, V_EPI + 20 + i, V_EPI + 36 + i
        a(f"v_lshlrev_b32 v{xx}, 16, v{xx}")
        a(f"v_lshlrev_b32 v{xn}, 16, v{xn}")
        a(f"v_lshlrev_b32 v{b2}, 16, v{b2}")
        bf16_round_inplace(a, y, t0)
        a(f"v_add_f32 v{y}, v{y}, v{b2}")
        bf16_round_inplace(a, y, t0)
        a(f"v_mul_f32 v{t0}, s55, v{y}")
        a(f"v_exp_f32 v{t0}, -v{t0}")
        a("s_nop 0")
        a(f"v_add_f32 v{t0}, 1.0, v{t0}")
        a(f"v_rcp_f32 v{t0}, v{t0}")
        a("s_nop 0")
        a(f"v_mul_f32 v{y}, v{y}, v{t0}")
        bf16_round_inplace(a, y, t0)
        a(f"v_mul_f32 v{xn}, v{xn}, v{dsk}")
        bf16_round_inplace(a, xn, t0)
        a(f"v_fma_f32 v{sv}, 2.0, v{sv}, v{xn}")
        a(f"v_fma_f32 v{sv}, v{sv}, v{y}, v{xx}")
        ro = 8 * (i // 4) + i % 4
        a(f"v_add_u32 v{t1}, {ro*2048}, v{V_EPI+3}")
        a(f"buffer_store_dword v{sv}, v{t1}, s[28:31], 0 offen")
    a("s_waitcnt vmcnt(0)")
    stamp(a, 16)
    a.label("fin_end")
    a("s_endpgm")
    return name, (208 if STAMP["on"] else 168), (100 if STAMP["on"] else 80)

def build(kernels, launches):
    a = Asm()
    head = []
    for ln in launches:
        head.append(f"; @launch kernel={ln[0]} grid=({ln[1]},1,1) block=({ln[2]},1,1) lds={ln[3]}")
    head.append('.amdgcn_target "amdgcn-amd-amdhsa--gfx950"')
    head.append(".text")
    descs = []
    for g in kernels:
        name, vg, sg = g(a)
        descs.append(kernel_desc(name, vg, sg))
    out = "\n".join(head) + "\n" + a.text() + '.section .rodata,"a"\n' + "\n".join(descs) + "\n"
    return out


if __name__ == "__main__":
    which = sys.argv[1] if len(sys.argv) > 1 else "all"
    ABL.update(x for x in which.split(",") if x != "all")
    dst = sys.argv[2] if len(sys.argv) > 2 else f"cdna_kernels/{NAME}.s"
    kernels = [gen_ln, gen_c1, gen_mid, gen_fin]
    if "stamp" in ABL:
        STAMP["on"] = True
        ABL.discard("stamp")
    for x in list(ABL):
        if x.startswith("nsl"):
            NSL = int(x[3:])
            ABL.discard(x)
    launches = [("ln_kernel", 641, 256, 0), ("c1_kernel", 384, 256, 73728), ("mid_kernel", 352, 256, 16384 * NSL), ("fin_kernel", 256, 256, 16384 * NSL)]
    open(dst, "w").write(build(kernels, launches))
    print("wrote", dst)
```
